```python
import torch

def _softmax(x, axis=-1):
    return torch.softmax(x, dim=axis)
def _gelu(x):
    return torch.nn.functional.gelu(x, approximate="tanh")
def _silu(x):
    return torch.nn.functional.silu(x)
def _sigmoid(x):
    return torch.sigmoid(x)
def _layernorm(x, axis=-1, eps=1e-5):
    m = x.mean(dim=axis, keepdim=True)
    v = x.var(dim=axis, keepdim=True, unbiased=False)
    return (x - m) / torch.sqrt(v + eps)
def _scatter_add(tgt, idx, src, axis=0):
    return tgt.clone().index_add_(axis, idx, src)
def _segment_sum(src, seg, n):
    out = torch.zeros((n,) + src.shape[1:], dtype=src.dtype)
    return out.index_add_(0, seg, src)
def _pad(x, pw):
    flat = tuple(v for pair in reversed(pw) for v in pair)
    return torch.nn.functional.pad(x, flat)

kernel_name = 'parallel_sum__ssm_conv_s5__dense_activation_silu__prompt'

def setup_inputs():

    _w = (lambda a: (lambda t: t.to(torch.bfloat16) if t.is_floating_point() else t)(torch.as_tensor(a)))
    def _A_setup():
        B, S, D = 1, 2048, 576
        P = D
        Lambda_re = -0.5 * (lambda _x: torch.exp(torch.as_tensor(_x)))((lambda *s: torch.randn(*s, dtype=torch.bfloat16) * 0.2)(P))
        Lambda_im = (lambda *s: torch.randn(*s, dtype=torch.bfloat16) * 0.8)(P) * 1.0
        B_re = (lambda *s: torch.randn(*s, dtype=torch.bfloat16) * 0.2)(P, D) * (D ** -0.5)
        B_im = (lambda *s: torch.randn(*s, dtype=torch.bfloat16) * 0.2)(P, D) * (D ** -0.5)
        C_re = (lambda *s: torch.randn(*s, dtype=torch.bfloat16) * 0.2)(D, P) * (P ** -0.5)
        C_im = (lambda *s: torch.randn(*s, dtype=torch.bfloat16) * 0.2)(D, P) * (P ** -0.5)
        log_dt = (lambda *s: torch.randn(*s, dtype=torch.bfloat16) * 0.2)(P) * 0.3 - 2.0
        Dskip = (lambda *s: torch.randn(*s, dtype=torch.bfloat16) * 0.05)(D)
        return {
            "x": _w((lambda *s: torch.randn(*s, dtype=torch.bfloat16) * 0.05)(B, S, D)),
            "Lambda_re": _w(Lambda_re),
            "Lambda_im": _w(Lambda_im),
            "B_re": _w(B_re),
            "B_im": _w(B_im),
            "C_re": _w(C_re),
            "C_im": _w(C_im),
            "log_dt": _w(log_dt),
            "Dskip": _w(Dskip),
        }
    _A_in = _A_setup()

    def _B_setup():
        B, S, D, F = 1, 2048, 576, 4608
        return {
            "x": _w((lambda *s: torch.randn(*s, dtype=torch.bfloat16) * 0.05)(B, S, D)),
            "w1": _w((lambda *s: torch.randn(*s, dtype=torch.bfloat16) * 0.8)(D, F) * (D ** -0.5)),
            "w2": _w((lambda *s: torch.randn(*s, dtype=torch.bfloat16) * 0.2)(F, D) * (F ** -0.5)),
        }
    _B_in = _B_setup()

    return {
        "A_x": _A_in["x"],
        "A_Lambda_re": _A_in["Lambda_re"],
        "A_Lambda_im": _A_in["Lambda_im"],
        "A_B_re": _A_in["B_re"],
        "A_B_im": _A_in["B_im"],
        "A_C_re": _A_in["C_re"],
        "A_C_im": _A_in["C_im"],
        "A_log_dt": _A_in["log_dt"],
        "A_Dskip": _A_in["Dskip"],
        "B_x": _B_in["x"],
        "B_w1": _B_in["w1"],
        "B_w2": _B_in["w2"],
    }

def reference(A_x, A_Lambda_re, A_Lambda_im, A_B_re, A_B_im, A_C_re, A_C_im, A_log_dt, A_Dskip, B_x, B_w1, B_w2):
    def _A_ref(x, Lambda_re, Lambda_im, B_re, B_im, C_re, C_im, log_dt, Dskip):
        Bsz, L, H = x.shape
        Lam = Lambda_re + 1j * Lambda_im
        Bmat = B_re + 1j * B_im
        Cmat = C_re + 1j * C_im
        dt = torch.exp(log_dt)
        Lam_bar = torch.exp(dt * Lam)
        B_bar = ((Lam_bar - 1.0) / Lam)[:, None] * Bmat
        Bu = torch.einsum("bld,pd->blp", x + 0j, B_bar)
        h = torch.zeros_like(Bu[:, 0, :])
        hs = []
        for t in range(L):
            h = Lam_bar[None, :] * h + Bu[:, t, :]
            hs.append(h)
        hseq = torch.stack(hs, 1)
        y = 2.0 * torch.einsum("blp,dp->bld", hseq, Cmat).real + x * Dskip[None, None, :]
        return y

    def _B_ref(x, w1, w2):
        h = torch.einsum("bsd,df->bsf", x, w1)
        h = _silu(h)
        out = torch.einsum("bsf,fd->bsd", h, w2)
        return out

    x = A_x
    xn = _layernorm(x, axis=-1)
    return x + _A_ref(xn, A_Lambda_re, A_Lambda_im, A_B_re, A_B_im, A_C_re, A_C_im, A_log_dt, A_Dskip) + _B_ref(xn, B_w1, B_w2)
```

```python
import re

class VR:
    all = []
    def __init__(self, name, n=1, align=None):
        self.name = name; self.n = n
        self.align = align if align else (1 if n == 1 else (2 if n < 4 else 4))
        self.id = len(VR.all); VR.all.append(self); self.base = None
    def __getitem__(self, k):
        if isinstance(k, slice):
            assert 0 <= k.start < k.stop <= self.n
            return f"%{self.id}.{k.start}.{k.stop - k.start}%"
        assert 0 <= k < self.n
        return f"%{self.id}.{k}.1%"
    def __str__(self): return f"%{self.id}.0.{self.n}%"
    def __format__(self, spec): return str(self)

def areg(b, n=1): return f"a{b}" if n == 1 else f"a[{b}:{b+n-1}]"
def sreg(b, n=1): return f"s{b}" if n == 1 else f"s[{b}:{b+n-1}]"

TRANS = ("v_exp_", "v_log_", "v_rcp_", "v_rsq_", "v_sqrt_", "v_sin_", "v_cos_")
_tok = re.compile(r"%(\d+)\.(\d+)\.(\d+)%|\b([vas])\[(\d+):(\d+)\]|\b([vas])(\d+)\b|\b(vcc|m0|exec)\b")

def regs_of(op):
    out = set()
    for m in _tok.finditer(op):
        if m.group(1) is not None:
            i, k, n = int(m.group(1)), int(m.group(2)), int(m.group(3))
            out |= {("V", i, k + x) for x in range(n)}
        elif m.group(4):
            out |= {(m.group(4), x) for x in range(int(m.group(5)), int(m.group(6)) + 1)}
        elif m.group(7):
            out.add((m.group(7), int(m.group(8))))
        else:
            out.add((m.group(9),))
    return out

class I:
    def __init__(self, text, tag=None, uses=None, delay=0, earliest=None, deadline=None):
        self.text = text.strip(); self.tag = tag; self.uses = uses or []
        self.delay = delay; self.earliest = earliest; self.deadline = deadline
        self.parse()
    def parse(self):
        t = self.text
        self.rd = set(); self.wr = set(); self.srcc = set(); self.srcab = set(); self.sdata = set()
        if t.endswith(":"): self.kind = "label"; self.op = ""; return
        if t.startswith("."): self.kind = "dir"; self.op = ""; return
        p = t.split(None, 1); op = p[0]; self.op = op
        rest = p[1] if len(p) > 1 else ""
        ops = [x.strip() for x in re.split(r",(?![^\[]*\])", rest)] if rest else []
        R = [regs_of(x) for x in ops]
        allr = set().union(*R) if R else set()
        tail = set().union(*R[1:]) if len(R) > 1 else set()
        if op in ("WAITVM", "WAITLG"): self.kind = "pwait"; self.wtag = rest.strip(); return
        if op.startswith("v_mfma"):
            self.kind = "mfma"; self.wr = R[0]; self.rd = tail; self.srcab = R[1] | R[2]; self.srcc = R[3]
        elif op.startswith("v_"):
            self.kind = "trans" if op.startswith(TRANS) else "valu"
            self.wr = set(R[0]); self.rd = set(tail)
            if op.startswith(("v_fmac", "v_dot2c")): self.rd |= R[0]
            if op.startswith("v_permlane") : self.rd |= R[0]; self.wr |= R[1]
            if op.startswith(("v_add_co", "v_addc_co")): self.wr |= R[1]
            if op == "v_nop": self.wr = set()
        elif op.startswith("ds_"):
            self.kind = "ds"
            if op.startswith("ds_write"): self.rd = allr
            else: self.wr = R[0]; self.rd = tail
        elif op.startswith(("buffer_", "global_")):
            self.kind = "vmem"
            if "_store" in op:
                self.rd = allr
                if "dwordx4" in op or "dwordx3" in op:
                    self.sdata = R[0] if op.startswith("buffer_") else R[1]
            elif re.search(r"\blds\b", rest): self.rd = allr | {("m0",)}
            else: self.wr = R[0]; self.rd = tail
        elif op.startswith("s_load") or op in ("s_memtime", "s_memrealtime"):
            self.kind = "smem"; self.wr = R[0]; self.rd = tail
        elif op == "s_waitcnt": self.kind = "wait"
        elif op == "s_barrier": self.kind = "bar"
        elif op == "s_nop": self.kind = "nop"
        elif op in ("s_endpgm", "s_sleep", "s_setprio"): self.kind = "misc"
        elif op.startswith(("s_cbranch", "s_branch")):
            self.kind = "branch"
            if "vcc" in op: self.rd = {("vcc",)}
        elif op.startswith("s_cmp") or op.startswith("s_bitcmp"): self.kind = "salu"; self.rd = allr
        elif op.startswith("s_"):
            self.kind = "salu"; self.wr = set(R[0]); self.rd = set(tail)
            if "saveexec" in op: self.wr.add(("exec",))
        else: raise ValueError(t)
        for u in self.uses: self.rd |= regs_of(str(u))
    @property
    def cost(self): return 8 if self.kind == "trans" else 4
    @property
    def cls(self):
        if self.kind in ("valu", "trans"): return 2
        if self.kind in ("ds", "vmem"): return 1
        return 0

def L(text, **kw):
    out = []
    for ln in text.split("\n"):
        ln = ln.split(";")[0].strip()
        if ln: out.append(I(ln, **kw))
    return out

class Gaps:
    def __init__(self, mf):
        self.mf = mf; self.n = len(mf)
        self.slot = [[[], [], []] for _ in mf]
    def put(self, g, ins):
        self.slot[g][ins.cls].append(ins)
    def free(self, g):
        s = self.slot[g]
        return 8 - 4*len(s[1]) - 4*max(0, sum(x.kind != 'label' for x in s[0]) - 1) - sum(x.cost for x in s[2])
    def put_salu(self, g, ins):
        while self.slot[g][0]: g += 1
        self.put(g, ins); return g
    def put_mem(self, g, ins):
        while self.free(g) < 4: g += 1
        self.put(g, ins); return g
    def run_streams(self, streams):
        n = self.n
        for st in streams:
            dl = n - 1
            for k in range(len(st) - 1, -1, -1):
                x = st[k]
                if x.deadline is not None: dl = min(dl, x.deadline)
                x.dl = dl
                step = x.delay
                if k > 0 and step == 0 and st[k-1].cls > x.cls: step = 1
                dl -= step
        pos = [0]*len(streams); last = [(-1, 0)]*len(streams)
        usable = [0]*(n + 1)
        for g in range(n - 1, -1, -1): usable[g] = usable[g+1] + max(0, self.free(g))//4
        def ready(si, g):
            st = streams[si]
            if pos[si] >= len(st): return False
            x = st[pos[si]]
            if x.earliest is not None and g < x.earliest: return False
            lg, lc = last[si]
            if lg >= 0 and g < lg + x.delay: return False
            if g == lg and x.cls < lc: return False
            return True
        credit = 0.0
        for g in range(n):
            base = max(0, self.free(g))//4
            pend = sorted(x.dl for si, st in enumerate(streams) for x in st[pos[si]:] if x.cls > 0)
            rate = 0.0
            for k, d in enumerate(pend):
                if k + 1 < len(pend) and pend[k+1] == d: continue
                over = (k + 1) - (usable[g] - usable[min(n, max(d, g) + 1)])
                if over > 0: rate = max(rate, over / (max(d, g) - g + 1))
            credit = min(credit + rate, 3.0) if rate > 0 else 0.0
            used = 0
            while True:
                c = [si for si in range(len(streams)) if ready(si, g)]
                if not c: break
                c.sort(key=lambda si: streams[si][pos[si]].dl)
                placed = False
                for si in c:
                    x = streams[si][pos[si]]
                    must = x.dl <= g
                    if x.cls == 0: ok = (not self.slot[g][0]) or must or getattr(x, "glue", False)
                    elif used < base and self.free(g) > 0: ok = True
                    elif credit >= 1.0: ok = True; credit -= 1.0
                    else: ok = must
                    if ok:
                        self.put(g, x); x.gap = g
                        if x.cls > 0: used += 1
                        last[si] = (g, x.cls); pos[si] += 1; placed = True
                        if x.dl < g: print(f"  deadline miss: {x.text} dl {x.dl} at {g}")
                        while pos[si] < len(streams[si]) and getattr(streams[si][pos[si]], "glue", False):
                            y = streams[si][pos[si]]; assert y.cls == x.cls
                            self.put(g, y); y.gap = g; pos[si] += 1
                        break
                if not placed: break
        left = []
        for si, st in enumerate(streams): left += st[pos[si]:]
        return left
    def linear(self):
        out = []
        for g in range(self.n):
            out.append(self.mf[g])
            for c in range(3): out += self.slot[g][c]
        return out
    def est_cycles(self, a=0, b=None):
        return sum(16 + max(0, -self.free(g)) for g in range(a, self.n if b is None else b))

def regalloc(code, extra, lo=1, hi=256):
    first = {}; last = {}
    def touch(ins, p):
        for r in ins.rd | ins.wr:
            if r[0] == "V":
                first.setdefault(r[1], p); last[r[1]] = p
    for p, ins in enumerate(code):
        touch(ins, p)
        if ins.kind == "branch":
            lab = ins.text.split()[-1]
            for x in extra.get(lab, []): touch(x, p)
    busy = [-1]*hi
    peak = 0
    for vid in sorted(first, key=lambda v: (first[v], -VR.all[v].n)):
        v = VR.all[vid]; s = first[vid]
        cand = range(lo + (-lo) % v.align, hi - v.n + 1, v.align)
        if v.n < 4: cand = reversed(cand)
        for b in cand:
            if all(busy[b + k] < s for k in range(v.n)):
                v.base = b
                for k in range(v.n): busy[b + k] = last[vid]
                break
        else:
            live = [(VR.all[u].name, VR.all[u].n) for u in first if first[u] <= s <= last[u]]
            raise RuntimeError(f"out of VGPRs at {s} for {v.name}: live {sum(n for _, n in live)} {live}")
        peak = max(peak, sum(1 for b in busy if b >= s))
    def sub(m):
        v = VR.all[int(m.group(1))]; b = v.base + int(m.group(2)); n = int(m.group(3))
        return f"v{b}" if n == 1 else f"v[{b}:{b+n-1}]"
    seen = set()
    for ins in code + [x for l in extra.values() for x in l]:
        if id(ins) in seen: continue
        seen.add(id(ins))
        ins.text = re.sub(r"%(\d+)\.(\d+)\.(\d+)%", sub, ins.text)
        ins.uses = [re.sub(r"%(\d+)\.(\d+)\.(\d+)%", sub, str(u)) for u in ins.uses]
        ins.parse()
    return peak

def insert_waits(code, report=None):
    out = []
    vm = []; lg = []; vdone = -1; ldone = -1
    auto = 0
    def emit(nv, nl):
        nonlocal vdone, ldone
        parts = []
        if nv is not None and nv > vdone:
            c = min(63, len(vm) - 1 - nv); parts.append(f"vmcnt({c})"); vdone = max(vdone, len(vm) - 1 - c)
        if nl is not None and nl > ldone:
            c = min(15, len(lg) - 1 - nl)
            if any(x.kind == "smem" for x in lg[ldone+1:]): c = 0
            parts.append(f"lgkmcnt({c})"); ldone = max(ldone, len(lg) - 1 - c)
        if parts:
            out.append(I("s_waitcnt " + " ".join(parts))); return True
        return False
    for ins in code:
        if ins.kind == "pwait":
            q = vm if ins.op == "WAITVM" else lg
            idx = [k for k, x in enumerate(q) if x.tag == ins.wtag]
            assert idx, ins.text
            if ins.op == "WAITVM": emit(idx[-1], None)
            else: emit(None, idx[-1])
            continue
        if ins.kind == "wait":
            m = re.search(r"vmcnt\((\d+)\)", ins.text)
            if m: vdone = max(vdone, len(vm) - 1 - int(m.group(1)))
            m = re.search(r"lgkmcnt\((\d+)\)", ins.text)
            if m and (int(m.group(1)) == 0 or not any(x.kind == "smem" for x in lg[ldone+1:])):
                ldone = max(ldone, len(lg) - 1 - int(m.group(1)))
            out.append(ins); continue
        t = ins.rd | ins.wr
        nv = max([k for k in range(vdone + 1, len(vm)) if vm[k].wr & t], default=None)
        nl = max([k for k in range(ldone + 1, len(lg)) if lg[k].wr & t], default=None)
        if emit(nv, nl):
            auto += 1
            if report is not None: report.append(ins.text)
        out.append(ins)
        if ins.kind == "vmem": vm.append(ins)
        if ins.kind in ("ds", "smem"): lg.append(ins)
    return out, auto

def need_states(p, c):
    n = 0
    isv = c.kind in ("valu", "trans")
    if p.kind == "mfma":
        big = "32x32" in p.op
        if c.kind == "mfma":
            if p.wr & c.srcab: n = max(n, 12 if big else 8)
            if p.wr & c.srcc and p.wr != c.srcc: n = max(n, 10 if big else 6)
        elif c.kind in ("valu", "trans", "ds", "vmem"):
            if p.wr & (c.rd | c.wr): n = max(n, 12 if big else 8)
            if isv and p.srcc & c.wr: n = max(n, 7 if big else 3)
    if p.kind in ("valu", "trans"):
        vw = {r for r in p.wr if r[0] in "va" and len(r) == 2}
        sw = p.wr - vw
        if c.kind == "mfma" and vw & c.rd: n = max(n, 2)
        if p.kind == "trans" and c.kind != "trans" and vw & c.rd: n = max(n, 1)
        if isv and sw & c.rd: n = max(n, 2)
        if c.kind == "vmem" and sw & c.rd: n = max(n, 5)
        if c.op.startswith(("v_readfirstlane", "v_readlane")) and vw & c.rd: n = max(n, 1)
        if (c.op.startswith("v_permlane") or "row_" in c.text or "quad_perm" in c.text) and vw & c.rd: n = max(n, 2)
        if c.kind in ("salu", "branch") and sw & c.rd: n = max(n, 1)
    if p.kind == "vmem" and p.sdata & c.wr: n = max(n, 2)
    if p.kind == "salu" and ("m0",) in p.wr and c.kind == "vmem" and ("m0",) in c.rd: n = max(n, 1)
    return n

def fix_hazards(code):
    out = []; added = 0
    for c in code:
        if c.kind not in ("label", "dir"):
            need = 0; dist = 0
            for p in reversed(out):
                if p.kind in ("label", "dir"): continue
                need = max(need, need_states(p, c) - dist)
                dist += (int(p.text.split()[1]) + 1) if p.kind == "nop" else 1
                if dist >= 14: break
            if need > 0:
                out.append(I(f"s_nop {need-1}")); added += need
        out.append(c)
    return out, added
```

```python
import sys, struct, math
from asmgen import *

NAME = "parallel_sum__ssm_conv_s5__dense_activation_silu__prompt"
def fb(x): return "0x%08x" % struct.unpack("<I", struct.pack("<f", x))[0]
LOG2E = 1.4426950408889634; LN2 = 0.6931471805599453
PBASE = 0x100000; STAMP = 0x80000
SENT = 0x7F817F81
SCR = 147456
MF = "v_mfma_f32_16x16x32_bf16"

DEF = dict(mapping="Q", krot=1, durot=0, npre=12, lag=4, D=12, NB=12, stamps=0, prefill=1,
           ldA=1500, ldStep=8, spin=20000)

sX, sW1, sW2, sB, sCR, sCI, sO, sWS, sD, sE, sL = [sreg(4*k + 4, 4) for k in range(11)]
J, MT, W, UM1, AO, M0B, SO0, SO1, SOS, SOL = [f"s{k}" for k in range(48, 58)]
KX = [f"s{k}" for k in range(58, 67)]
T0 = "s67"
KA = 68
DUO = [f"s{k}" for k in range(68, 74)]
TOFF = [f"s{k}" for k in range(74, 83)]
PB = "s83"
T1, T2 = "s86", "s87"
MK = ["s[88:89]", "s[90:91]", "s[92:93]"]
Z0, Z1 = "s94", "s95"
CNT = "s96"; HI16 = "s97"
ACC = "s[98:99]"
XB = "s100"; T3 = "s101"
FLIP = "s3"

def aXN(ks, tt): return areg(8*ks + 4*tt, 4)
RING = 144
aHS = lambda part, s, tt, h=None: areg(192 + 16*part + 8*s + 4*tt + (0 if h is None else 2*h), 4 if h is None else 2)
aSEL = areg(224, 4); aSENT = areg(228, 4)

class Role:
    def __init__(self, role, P):
        self.role = role; self.P = P; self.extra = {}; self.nst = 0
        self.lab = {"mixed": "M", "pure": "F", "helper": "H"}[role]
    def stamp(self, k):
        if not self.P["stamps"]: return []
        return L(f"s_memrealtime s[0:1]\ns_waitcnt lgkmcnt(0)\nv_writelane_b32 {self.vst}, s0, {k}")

    def prologue(self):
        P = self.P; role = self.role; mixed = role == "mixed"; helper = role == "helper"
        c = []
        V = lambda n, k=1: VR(n, k)
        self.lane = lane = V("lane")
        rho, sig, i16, q = V("rho"), V("sig"), V("i16"), V("q")
        self.i16, self.q = i16, q
        pn0, pn1 = V("pn0"), V("pn1")
        vx0, vx1 = V("vx0"), V("vx1")
        t0, t1, t2 = V("t0"), V("t1"), V("t2")
        if P["stamps"]:
            self.vst = V("vst")
            c += L(f"v_mov_b32 {self.vst}, 0\nv_writelane_b32 {self.vst}, s{KA+30}, 0")
        c += L(f"""
        s_add_u32 {T0}, {J}, {MT}
        s_mul_i32 {T1}, {T0}, 57
        s_lshr_b32 {T1}, {T1}, 9
        s_mul_i32 {T1}, {T1}, 9
        s_sub_u32 {T0}, {T0}, {T1}
        s_mul_i32 {T0}, {T0}, {128*P['krot']}
        s_mul_i32 {XB}, {MT}, {128*1152}
        s_lshl_b32 {M0B}, {W}, 11
        v_and_b32 {lane}, 63, v0
        v_lshrrev_b32 {rho}, 3, {lane}
        v_and_b32 {sig}, 7, {lane}
        v_lshrrev_b32 {t0}, 1, {rho}
        v_xor_b32 {t0}, {sig}, {t0}
        v_lshlrev_b32 {pn0}, 4, {t0}
        v_xor_b32 {pn1}, 64, {pn0}
        v_and_b32 {t0}, 4, {rho}
        v_add_u32 {t0}, {rho}, {t0}
        s_lshl_b32 {T1}, {W}, 5
        v_add_u32 {t0}, {T1}, {t0}
        v_mul_u32_u24 {t0}, 1152, {t0}
        v_add_u32 {vx0}, {t0}, {pn0}
        v_add_u32 {t0}, {16*1152-1024}, {t0}
        v_add_u32 {vx1}, {t0}, {pn1}
        """)
        for k in range(9):
            c += L(f"s_add_u32 {T1}, {T0}, {128*k}\ns_sub_u32 {T2}, {T1}, 1152\ns_min_u32 {KX[k]}, {T1}, {T2}")
        c += L(f"""
        s_mov_b32 s6, {2048*1152}
        s_mov_b32 s7, 0x20000
        s_waitcnt lgkmcnt(0)
        s_mov_b32 s4, s{KA}
        s_mov_b32 s5, s{KA+1}
        """)
        fill = []
        f = lambda s: fill.extend(L(s))
        if mixed:
            pl = [V("pLre"), V("pLim"), V("pLdt")]
            pv = V("pv")
            par_loads = L(f"""
            s_lshl_b32 {T1}, {J}, 7
            v_lshl_add_u32 {pv}, {lane}, 1, {T1}
            global_load_ushort {pl[0]}, {pv}, s[{KA+2}:{KA+3}]
            global_load_ushort {pl[1]}, {pv}, s[{KA+4}:{KA+5}]
            global_load_ushort {pl[2]}, {pv}, s[{KA+14}:{KA+15}]
            """)
        else: par_loads = []
        XA = [[V(f"xa{s}{g}") for g in range(3)] for s in range(2)]
        f(f"""
        v_and_b32 {i16}, 15, {lane}
        v_lshrrev_b32 {q}, 4, {lane}
        v_lshrrev_b32 {t0}, 1, {i16}
        v_xor_b32 {t0}, {q}, {t0}
        v_lshlrev_b32 {t0}, 4, {t0}
        v_lshl_add_u32 {t0}, {i16}, 7, {t0}
        v_add_u32 {XA[0][0]}, {M0B}, {t0}
        v_xor_b32 {XA[1][0]}, 64, {XA[0][0]}
        """)
        for g in (1, 2):
            for s in range(2): f(f"v_add_u32 {XA[s][g]}, {49152*g}, {XA[s][0]}")
        ones = V("ones", 4)
        for k in range(4): f(f"v_mov_b32 {ones[k]}, 0x3f803f80")
        nfirst = len(fill)
        if mixed:
            self.NA = NA = [[V(f"na{s}{g}") for g in range(3)] for s in range(2)]
            for s in range(2):
                for g in range(3): f(f"v_subrev_u32 {NA[s][g]}, {M0B}, {XA[s][g]}")
        def srd(b, src, nbytes): f(f"s_mov_b32 s{b}, s{src}\ns_mov_b32 s{b+1}, s{src+1}\ns_mov_b32 s{b+2}, {nbytes}\ns_mov_b32 s{b+3}, 0x20000")
        if not helper:
            srd(8, 88, 576*4608*2); srd(12, 90, 576*4608*2)
        if mixed:
            fill.extend(L(f"s_bitcmp1_b32 {W}, 0\ns_cselect_b32 s16, s{KA+8}, s{KA+6}\ns_cselect_b32 s17, s{KA+9}, s{KA+7}"))
            for x in fill[-2:]: x.glue = True
            f(f"s_mov_b32 s18, {576*1152}\ns_mov_b32 s19, 0x20000")
            srd(20, KA+10, 576*1152); srd(24, KA+12, 576*1152)
            fill.extend(L(f"s_lshl_b32 {T1}, {J}, 13\ns_add_u32 s40, s96, {T1}\ns_addc_u32 s41, s97, 0"))
            fill[-1].glue = True
            f("s_mov_b32 s42, 8192\ns_mov_b32 s43, 0x20000")
        srd(28, 92, 2048*576*4); srd(36, 94, 256); srd(32, 96, 0x4000000)
        f("s_mov_b32 s44, s96\ns_mov_b32 s45, s97\n" + f"s_mov_b32 s46, {15*8192}\ns_mov_b32 s47, 0x20000")
        f(f"s_mov_b32 {HI16}, 0xffff0000\ns_mov_b64 {ACC}, -1")
        if helper:
            f(f"s_mov_b32 {UM1}, 0\ns_mov_b32 {AO}, 0")
        else:
            f(f"s_add_u32 {T1}, {J}, 1\ns_lshr_b32 {UM1}, {T1}, 1\ns_and_b32 {AO}, {T1}, 1\ns_xor_b32 {FLIP}, {AO}, 1")
        f(f"s_sub_u32 {T1}, {MT}, 9\ns_min_u32 {T3}, {MT}, {T1}")
        if not helper:
            f(f"s_lshl_b32 {TOFF[0]}, {T3}, 7")
            for n in range(1, 9):
                f(f"""s_add_u32 {T1}, {UM1}, {n}
                s_and_b32 {T1}, {T1}, 7
                s_add_u32 {T1}, {T1}, {T3}
                s_add_u32 {T1}, {T1}, 1
                s_sub_u32 {T2}, {T1}, 9
                s_min_u32 {T1}, {T1}, {T2}
                s_lshl_b32 {TOFF[n]}, {T1}, 7""")
            f(f"""s_mul_i32 {T1}, {MT}, {18*131072}
            s_add_u32 {T1}, {T1}, {PBASE}
            s_lshl_b32 {T2}, {J}, 13
            s_sub_u32 {PB}, {T1}, {T2}
            s_add_u32 {PB}, {PB}, {14*8192}
            s_add_u32 {T2}, {J}, 3
            s_lshl_b32 {T2}, {T2}, 17
            s_add_u32 {T1}, {T1}, {T2}""")
            fill.extend(L(f"s_add_u32 s44, s44, {T1}\ns_addc_u32 s45, s45, 0")); fill[-1].glue = True
            f(f"s_lshl_b32 {T1}, {AO}, 13\ns_add_u32 {Z0}, {T1}, {14*8192}\ns_sub_u32 {Z1}, {15*8192}, {T1}")
            if mixed:
                f(f"s_lshl_b32 {T1}, {J}, 9")
                f(f"s_mul_i32 {DUO[0]}, {J}, {64*1152}\ns_add_u32 {DUO[1]}, {DUO[0]}, {32*1152}")
                for d in range(2, 6):
                    if P["durot"]:
                        f(f"s_add_u32 {T2}, {MT}, {d}\ns_and_b32 {T2}, {T2}, 3\ns_lshl_b32 {T2}, {T2}, 7\ns_add_u32 {DUO[d]}, {T1}, {T2}")
                    else: f(f"s_add_u32 {DUO[d]}, {T1}, {128*(d-2)}")
            else:
                f(f"s_mul_i32 {T1}, {J}, 768\ns_sub_u32 {T1}, {T1}, {768*9 - 4608}")
                if P["durot"]:
                    f(f"s_mul_i32 {T2}, {MT}, 43\ns_lshr_b32 {T2}, {T2}, 8\ns_mul_i32 {T2}, {T2}, 6\ns_sub_u32 {T0}, {MT}, {T2}")
                for d in range(6):
                    if P["durot"]:
                        f(f"s_add_u32 {T2}, {T0}, {d}\ns_sub_u32 {SO1}, {T2}, 6\ns_min_u32 {T2}, {T2}, {SO1}\ns_lshl_b32 {T2}, {T2}, 7\ns_add_u32 {DUO[d]}, {T1}, {T2}")
                    else: f(f"s_add_u32 {DUO[d]}, {T1}, {128*d}")
            rr = V("rr")
            self.vw1 = vw1 = [V("vw1a"), V("vw1b")]; self.vw2 = vw2 = [V("vw2a"), V("vw2b")]
            f(f"""s_lshl_b32 {T1}, {W}, 4
            v_add_u32 {rr}, {T1}, {rho}
            v_and_b32 {t0}, 2, {rho}
            v_xor_b32 {t0}, {sig}, {t0}
            v_lshlrev_b32 {t0}, 4, {t0}
            v_mul_u32_u24 {t1}, 9216, {rr}
            v_add_u32 {vw1[0]}, {t1}, {t0}
            v_xor_b32 {t0}, 64, {t0}
            v_add_u32 {t1}, {8*9216-1024}, {t1}
            v_add_u32 {vw1[1]}, {t1}, {t0}
            v_and_b32 {t0}, 6, {rho}
            v_xor_b32 {t0}, {sig}, {t0}
            s_lshl_b32 {T1}, {FLIP}, 2
            v_xor_b32 {t0}, {T1}, {t0}
            v_lshlrev_b32 {t0}, 4, {t0}
            v_mul_u32_u24 {t1}, 1152, {rr}
            v_add_u32 {vw2[0]}, {t1}, {t0}
            v_add_u32 {vw2[1]}, {8*1152-1024}, {vw2[0]}""")
            if mixed:
                self.vb = vb = [V("vba"), V("vbb")]; self.vc = vc = [V("vca"), V("vcb")]
                f(f"""s_lshr_b32 {T1}, {W}, 1
                s_lshl_b32 {T1}, {T1}, 4
                v_add_u32 {t1}, {T1}, {rho}
                v_mul_u32_u24 {t1}, 1152, {t1}
                v_add_u32 {vb[0]}, {t1}, {pn0}
                v_add_u32 {t1}, {8*1152-1024}, {t1}
                v_add_u32 {vb[1]}, {t1}, {pn1}
                s_lshl_b32 {T1}, {FLIP}, 5
                v_xor_b32 {t1}, {T1}, {rr}
                v_mul_u32_u24 {t1}, 1152, {t1}
                s_lshl_b32 {T1}, {J}, 7
                v_add_u32 {t1}, {T1}, {t1}
                v_add_u32 {vc[0]}, {t1}, {pn0}
                v_add_u32 {t1}, {8*1152-1024}, {t1}
                v_add_u32 {vc[1]}, {t1}, {pn1}""")
            self.TA = TA = [[V(f"ta{i}{g}") for g in range(3)] for i in range(4)]
            f(f"""v_bfe_u32 {t0}, {lane}, 2, 2
            v_lshl_add_u32 {t0}, {q}, 3, {t0}
            v_lshlrev_b32 {t0}, 7, {t0}
            v_bfe_u32 {t1}, {lane}, 3, 2
            v_lshl_add_u32 {t0}, {t1}, 5, {t0}
            v_and_b32 {t1}, 3, {lane}
            v_lshl_add_u32 {TA[0][0]}, {t1}, 3, {t0}""")
            for i in range(1, 4): f(f"v_xor_b32 {TA[i][0]}, {32*i}, {TA[0][0]}")
            for g in (1, 2):
                for i in range(4): f(f"v_add_u32 {TA[i][g]}, {49152*g}, {TA[i][0]}")
            self.vp = vp = [V("vpa"), V("vpb")]
            f(f"""v_lshl_add_u32 {t0}, {lane}, 4, {M0B}
            s_lshl_b32 {T1}, {FLIP}, 17
            v_add_u32 {vp[0]}, {T1}, {t0}
            v_xor_b32 {vp[1]}, 0x20000, {vp[0]}
            v_mov_b32 {t0}, {hex(SENT)}""")
            for k in range(4): f(f"v_accvgpr_write_b32 a{228+k}, {t0}")
        f(f"""v_lshrrev_b32 {t0}, 2, {i16}
        v_cmp_eq_u32 {MK[0]}, {t0}, {q}
        v_and_b32 {t1}, 1, {lane}
        v_lshlrev_b32 {t1}, 4, {t1}
        v_mov_b32 {t2}, 0x3f80
        v_lshlrev_b32 {t2}, {t1}, {t2}
        v_cndmask_b32 {t2}, 0, {t2}, {MK[0]}
        v_and_b32 {t1}, 2, {lane}
        v_cmp_eq_u32 {MK[0]}, 0, {t1}
        v_cndmask_b32 {t1}, 0, {t2}, {MK[0]}
        v_cndmask_b32 {t2}, {t2}, 0, {MK[0]}
        v_accvgpr_write_b32 a224, {t1}
        v_accvgpr_write_b32 a225, {t2}
        v_accvgpr_write_b32 a226, {t1}
        v_accvgpr_write_b32 a227, {t2}""")
        bp = V("bp")
        f(f"""v_lshl_add_u32 {bp}, {t0}, 4, {i16}
        v_lshlrev_b32 {bp}, 2, {bp}
        v_and_b32 {t1}, 3, {lane}
        v_cmp_eq_u32 {MK[0]}, 1, {t1}
        v_cmp_eq_u32 {MK[1]}, 2, {t1}
        v_cmp_eq_u32 {MK[2]}, 3, {t1}""")
        self.scr = scr = V("scr")
        f(f"s_lshl_b32 {T1}, {W}, 12\ns_add_u32 {T1}, {T1}, {SCR}\nv_lshl_add_u32 {scr}, {lane}, 3, {T1}")
        if mixed: fill += self.ssm_params(pl)
        self.xv = xv = [[V(f"x{ks}_{tt}", 4) for tt in range(2)] for ks in range(18)]
        accS = [V("accS0", 4), V("accS1", 4)]; accQ = [V("accQ0", 4), V("accQ1", 4)]
        self.mean = mean = [V("mean0"), V("mean1")]; self.rs = rs = [V("rs0"), V("rs1")]
        kb = [V("kb0", 2), V("kb1", 2)]
        def stats_fin(tt):
            a, b = V("sa"), V("sb")
            o = L(f"""
            v_cndmask_b32 {a}, {accQ[tt][0]}, {accQ[tt][1]}, {MK[0]}
            v_cndmask_b32 {a}, {a}, {accQ[tt][2]}, {MK[1]}
            v_cndmask_b32 {a}, {a}, {accQ[tt][3]}, {MK[2]}
            ds_bpermute_b32 {a}, {bp}, {a}
            v_mul_f32 {b}, {fb(1/576)}, {accS[tt][0]}
            v_cvt_pk_bf16_f32 {mean[tt]}, {b}, {b}
            v_and_b32 {mean[tt]}, {HI16}, {mean[tt]}
            v_mul_f32 {b}, {b}, {b}
            v_mul_f32 {a}, {fb(1/576)}, {a}
            v_sub_f32 {a}, {a}, {b}
            v_max_f32 {a}, 0, {a}
            v_cvt_pk_bf16_f32 {a}, {a}, {a}
            v_and_b32 {a}, {HI16}, {a}
            v_add_f32 {a}, {fb(1e-5)}, {a}
            v_cvt_pk_bf16_f32 {a}, {a}, {a}
            v_and_b32 {a}, {HI16}, {a}
            v_sqrt_f32 {a}, {a}
            v_cvt_pk_bf16_f32 {a}, {a}, {a}
            v_and_b32 {a}, {HI16}, {a}
            v_rcp_f32 {rs[tt]}, {a}
            """)
            if not helper:
                o += L(f"v_mul_f32 {kb[tt][0]}, {fb(LOG2E)}, {rs[tt]}\nv_mul_f32 {kb[tt][1]}, {mean[tt]}, {kb[tt][0]}")
            return o
        def norm_unit(tt, b):
            o = []; tm = [V("ntm", 2) for _ in range(8)]
            regs = [xv[2*b + s][tt][k] for s in range(2) for k in range(4)]
            for k in range(8): o += L(f"v_lshlrev_b32 {tm[k][0]}, 16, {regs[k]}\nv_and_b32 {tm[k][1]}, {HI16}, {regs[k]}")
            for k in range(8): o += L(f"v_pk_fma_f32 {tm[k]}, {tm[k]}, {kb[tt]}, {kb[tt]} op_sel:[0,0,1] op_sel_hi:[1,0,1] neg_lo:[0,0,1] neg_hi:[0,0,1]")
            for k in range(8): o += L(f"v_cvt_pk_bf16_f32 {regs[k]}, {tm[k][0]}, {tm[k][1]}")
            return o
        lag = P["lag"]; npre = 0 if helper else P["npre"]
        nsteps = max(18 + npre, 18 + lag + 1)
        norm_q = []
        nfill_steps = 9 + lag
        rest = fill[nfirst:]; per = -(-len(rest) // (nfill_steps - 1)); fi = 0
        for k in range(nsteps):
            if k < 18:
                tt, b = divmod(k, 9)
                c += L(f"s_add_u32 m0, {M0B}, {k*8192}")
                if k == 9: c += L(f"s_add_u32 {XB}, {XB}, {4*1152}")
                c += L(f"s_add_u32 {SO0}, {XB}, {KX[b]}")
                c += [I(f"buffer_load_dwordx4 {vx0}, {sX}, {SO0} offen lds"), I(f"buffer_load_dwordx4 {vx1}, {sX}, {SO0} offen offset:1024 lds", tag=f"x{k}")]
                if k == 0: c += par_loads + fill[:nfirst]
            elif k - 18 < npre:
                sal, dm = self.dma_chunk(k - 18)
                c += sal + dm
            u = k - lag
            if 0 <= u < 18:
                tt, b = divmod(u, 9)
                c.append(I(f"WAITVM x{u}"))
                for s in range(2):
                    c.append(I(f"ds_read_b128 {xv[2*b+s][tt]}, {XA[s][u//6]} offset:{(u%6)*8192}"))
            u = k - lag - 1
            if 0 <= u < 18:
                tt, b = divmod(u, 9)
                for s in range(2):
                    x = xv[2*b+s][tt]; first = b == 0 and s == 0
                    c.append(I(f"{MF} {accS[tt]}, {ones}, {x}, {0 if first else accS[tt]}"))
                    c.append(I(f"{MF} {accQ[tt]}, {x}, {x}, {0 if first else accQ[tt]}"))
            if 1 <= k < nfill_steps:
                e = min(len(rest), fi + per)
                while e < len(rest) and getattr(rest[e], "glue", False): e += 1
                c += rest[fi:e]; fi = e
            if norm_q and u != 17: c += norm_q.pop(0)
            if u in (8, 17):
                tt = u // 9
                if u == 8: assert fi >= len(rest)
                if u == 17:
                    while norm_q: c += norm_q.pop(0)
                c += stats_fin(tt)
                if u == 17: c += self.stamp(1)
                if not helper: norm_q = [norm_unit(tt, b) for b in range(9)]
        while norm_q: c += norm_q.pop(0)
        return c

    def ssm_params(self, pl):
        V = lambda n, k=1: VR(n, k)
        lre, lim, ldt = pl
        par = V("par", 4); a, th, t, u = V("pa"), V("pth"), V("pt"), V("pu")
        o = L(f"""
        v_lshlrev_b32 {lre}, 16, {lre}
        v_lshlrev_b32 {lim}, 16, {lim}
        v_lshlrev_b32 {ldt}, 16, {ldt}
        v_mul_f32 {ldt}, {fb(LOG2E)}, {ldt}
        v_exp_f32 {ldt}, {ldt}
        v_cvt_pk_bf16_f32 {ldt}, {ldt}, {ldt}
        v_and_b32 {ldt}, {HI16}, {ldt}
        v_mul_f32 {a}, {ldt}, {lre}
        v_mul_f32 {th}, {ldt}, {lim}
        v_mul_f32 {a}, {fb(LOG2E)}, {a}
        v_exp_f32 {a}, {a}
        v_mul_f32 {th}, {fb(0.5/math.pi)}, {th}
        v_rndne_f32 {t}, {th}
        v_sub_f32 {th}, {th}, {t}
        v_cos_f32 {t}, {th}
        v_sin_f32 {u}, {th}
        v_mul_f32 {par[0]}, {a}, {t}
        v_mul_f32 {par[1]}, {a}, {u}
        v_mul_f32 {t}, {lre}, {lre}
        v_fmac_f32 {t}, {lim}, {lim}
        v_rcp_f32 {t}, {t}
        v_add_f32 {a}, -1.0, {par[0]}
        v_add_f32 {t}, {t}, {t}
        v_mul_f32 {u}, {a}, {lre}
        v_fmac_f32 {u}, {par[1]}, {lim}
        v_mul_f32 {par[2]}, {u}, {t}
        v_mul_f32 {u}, {par[1]}, {lre}
        v_fma_f32 {u}, -{a}, {lim}, {u}
        v_mul_f32 {par[3]}, {u}, {t}
        """)
        wa, ra = V("pwa"), V("pra")
        self.gp = gp = [V(f"gp{g}", 4) for g in range(4)]
        o += L(f"""
        v_lshlrev_b32 {t}, 3, {self.lane}
        v_add_u32 {wa}, {self.scr}, {t}
        v_lshlrev_b32 {t}, 8, {self.q}
        v_sub_u32 {ra}, {wa}, {t}
        ds_write_b128 {wa}, {par}
        """)
        for g in range(4): o.append(I(f"ds_read_b128 {gp[g]}, {ra} offset:{256*g}"))
        def sq(dst, src):
            return L(f"""v_mul_f32 {t}, {src[1]}, {src[1]}
            v_add_f32 {u}, {src[0]}, {src[0]}
            v_fma_f32 {t}, {src[0]}, {src[0]}, -{t}
            v_mul_f32 {dst[1]}, {u}, {src[1]}
            v_mov_b32 {dst[0]}, {t}""")
        self.l8, self.l32, self.l128, self.lw = l8, l32, l128, lw = V("l8", 2), V("l32", 2), V("l128", 2), V("lw", 2)
        l64 = V("l64", 2)
        o += sq(l8, par) + sq(l8, l8) + sq(l8, l8) + sq(l32, l8) + sq(l32, l32) + sq(l64, l32) + sq(l128, l64)
        g1 = L(f"s_bitcmp1_b32 {W}, 0\ns_cselect_b64 vcc, -1, 0\nv_cndmask_b32 {a}, 1.0, {l32[0]}, vcc\nv_cndmask_b32 {th}, 0, {l32[1]}, vcc")
        g2 = L(f"s_bitcmp1_b32 {W}, 1\ns_cselect_b64 vcc, -1, 0\nv_cndmask_b32 {l64[0]}, 1.0, {l64[0]}, vcc\nv_cndmask_b32 {l64[1]}, 0, {l64[1]}, vcc")
        for g in (g1, g2):
            for x in g[1:]: x.glue = True
        o += g1 + g2
        o += L(f"""v_mul_f32 {lw[0]}, {a}, {l64[0]}
        v_fma_f32 {lw[0]}, -{th}, {l64[1]}, {lw[0]}
        v_mul_f32 {lw[1]}, {a}, {l64[1]}
        v_fmac_f32 {lw[1]}, {th}, {l64[0]}""")
        return o

    def kblock(self, c):
        if self.role == "pure": return ("F", c)
        return [("F", 2), ("F", 3), ("F", 4), ("S", 0), ("S", 1), ("F", 5)][c]
    def chunk_type(self, ch):
        if ch < 54: return "N" if (self.role == "mixed" and ch < 18) else "T1"
        return "T2" if self.kblock((ch - 54) % 6)[0] == "F" else "N"
    def dma_chunk(self, ch):
        so = SO0 if ch % 2 == 0 else SO1
        sal = L(f"s_add_u32 m0, {M0B}, {(ch % 18)*8192}")
        if ch < 54:
            d, c = divmod(ch, 9)
            if self.chunk_type(ch) == "N":
                sal += L(f"s_add_u32 {so}, {DUO[d]}, {KX[c]}"); v, srd = self.vb, sB
            else:
                sal += L(f"s_mul_i32 {so}, {KX[c]}, 4608\ns_add_u32 {so}, {so}, {DUO[d]}"); v, srd = self.vw1, sW1
        else:
            n, c = divmod(ch - 54, 6)
            kind, d = self.kblock(c)
            if kind == "F":
                sal += L(f"s_mul_i32 {so}, {DUO[d]}, 576\ns_add_u32 {so}, {so}, {TOFF[n]}"); v, srd = self.vw2, sW2
            else:
                sal += L(f"s_mul_i32 {so}, {TOFF[n]}, 576"); v, srd = self.vc, (sCR if d == 0 else sCI)
        sal = sal[1:] + sal[:1]
        dm = [I(f"buffer_load_dwordx4 {v[0]}, {srd}, {so} offen lds", tag=f"g{ch//6}"),
              I(f"buffer_load_dwordx4 {v[1]}, {srd}, {so} offen offset:1024 lds", tag=f"g{ch//6}")]
        for x in dm: x.needs = [sal[-1], sal[-2]]
        return sal, dm
    def frag_reads(self, f, ch, tile, s):
        r = RING + 4*(f % self.P["NB"]); g = (ch // 6) % 3; base = (ch % 6)*8192
        ty = self.chunk_type(ch)
        if ty == "N":
            return [I(f"ds_read_b128 {areg(r, 4)}, {self.NA[s][g]} offset:{base + tile*2048}", tag=f"f{f}")]
        hs = 512 if ty == "T1" else 2048
        return [I(f"ds_read_b64_tr_b16 {areg(r + 2*h, 2)}, {self.TA[tile][g]} offset:{base + s*4096 + h*hs}", tag=f"f{f}") for h in range(2)]

    def main(self):
        P = self.P; mixed = self.role == "mixed"; D = P["D"]
        V = lambda n, k=1: VR(n, k)
        pairs = []
        for gam in range(9):
            chs = list(range(6*gam, 6*gam + 6))
            for d in sorted(set(ch // 9 for ch in chs)):
                seg = [ch for ch in chs if ch // 9 == d]
                pairs += [(ch, t) for t in range(4) for ch in seg]
        for n in range(9):
            chs = list(range(54 + 6*n, 60 + 6*n))
            if n == 0: pairs += [(ch, t) for ch in chs for t in range(4)]
            else: pairs += [(ch, t) for t in range(4) for ch in chs]
        acc = {}; done = {}; firstuse = {}
        self.H = H = {(d, a, tt): V(f"H{d}{a}{tt}", 4) for d in range(6) for a in range(2) for tt in range(2)}
        mf = []; frags = []
        prev = None; tfirst = 0
        for k, (ch, t) in enumerate(pairs):
            unit = ("d", ch // 9) if ch < 54 else ("n", (ch - 54)//6)
            tfirst = (1 - tfirst) if prev == (unit, t) else 0
            prev = (unit, t)
            frags += [(ch, t, 0), (ch, t, 1)]
            for tt in (tfirst, 1 - tfirst):
                for s in range(2):
                    key = (unit, t, tt)
                    new = key not in acc
                    if new: acc[key] = V(f"acc{unit[0]}{unit[1]}_{t}{tt}", 4)
                    fr = areg(RING + 4*((2*k + s) % P["NB"]), 4)
                    if ch < 54:
                        ks = 2*(ch % 9) + s
                        o = self.xv[ks][tt] if ch < 9 else aXN(ks, tt)
                        okey = ("x", ks, tt, ch < 9)
                    else:
                        kind, d = self.kblock((ch - 54) % 6)
                        o = H[(d, s, tt)] if kind == "F" else aHS(d, s, tt)
                        okey = (kind, d, s, tt)
                    firstuse.setdefault(okey, len(mf))
                    a_, b_ = (o, fr) if (ch < 54 and self.chunk_type(ch) == "N") else (fr, o)
                    mf.append(I(f"{MF} {acc[key]}, {a_}, {b_}, {0 if new else acc[key]}"))
                    done[key] = len(mf) - 1
        G = Gaps(mf); N = len(mf)
        pre = []
        for f, (ch, t, s) in enumerate(frags):
            for h, rd in enumerate(self.frag_reads(f, ch, t, s)):
                g = 2*f + h - D
                if g < 0: pre.append(rd)
                else: G.put(g, rd)
        for k in range(1, len(pairs)): G.put(4*k - 1, I(f"WAITLG f{2*k+1}"))
        bar = {}
        for gam in range(1, 18):
            g = 96*gam - D; bar[gam] = g
            G.put(g - 2, I(f"WAITVM g{gam}")); G.put(g, I("s_barrier"))
        for ch in range(P["npre"], 108):
            gam = ch // 6
            if ch < 18:
                k = ch - P["npre"]; step = 96 // (18 - P["npre"]) // 4 * 4
                if ch < 12: step = min(step, 8)
                g0 = k*step if ch < 12 or P["npre"] >= 12 else (12 - P["npre"])*8 + (ch - 12)*8
                half = step // 2
            else:
                g0 = 96*(gam - 2) + 16*(ch % 6); half = 8
            sal, dm = self.dma_chunk(ch)
            g = g0
            for x in sal: g = G.put_salu(g, x)
            g = G.put_mem(g + 1, dm[0]); G.put_mem(g + max(1, min(half, 6)), dm[1])
        streams = []
        st = []
        for ks in range(18):
            for tt in range(2):
                for k in range(4):
                    st.append(I(f"v_accvgpr_write_b32 a{8*ks+4*tt+k}, {self.xv[ks][tt][k]}", deadline=min(150, firstuse[("x", ks, tt, False)] - 2)))
        streams.append(st)
        els = []
        for key in sorted([k for k in acc if k[0][0] == "d" and not (mixed and k[0][1] < 2)], key=lambda k: done[k]):
            (_, d), t, tt = key
            dl = min(firstuse[("F", d, t // 2, tt)] - 2, 144*(d + 2) + 30*t)
            for r in range(4): els.append((acc[key][r], H[(d, t // 2, tt)][2*(t % 2) + r // 2], done[key] + 3, dl))
        st = []; n = len(els); tm = [V("stm") for _ in range(n)]
        for i in range(n + 3):
            if i < n: st.append(I(f"v_exp_f32 {tm[i]}, -{els[i][0]}", earliest=els[i][2]))
            j = i - 3
            if 0 <= j < n: st.append(I(f"v_mul_f32 {tm[j]}, {tm[j]}, {els[j][0]}"))
            j = i - 2
            if 0 <= j < n: st.append(I(f"v_rcp_f32 {tm[j]}, {tm[j]}"))
            j = i - 1
            if 0 <= j < n: st.append(I(f"v_add_f32 {tm[j]}, 1.0, {tm[j]}"))
            j = i - 3
            if 0 <= j < n and j % 2 == 1: st.append(I(f"v_cvt_pk_bf16_f32 {els[j][1]}, {tm[j-1]}, {tm[j]}", deadline=els[j][3]))
        streams.append(st)
        st = []; q512 = V("q512")
        st.append(I(f"v_lshlrev_b32 {q512}, 9, {self.q}", earliest=bar[7]))
        for g in range(3):
            for i in range(4):
                st.append(I(f"v_sub_u32 {self.TA[i][g]}, {self.TA[i][g]}, {q512}", earliest=bar[7 + g], deadline=bar[9 + g] - 2))
        streams.append(st)
        def po(n):
            if n == 0: return L(f"s_mov_b32 {SOS}, {PB}")
            return L(f"s_add_u32 {SOS}, {UM1}, {n}\ns_and_b32 {SOS}, {SOS}, 7\ns_add_u32 {SOS}, {SOS}, 1\ns_lshl_b32 {SOS}, {SOS}, 18\ns_add_u32 {SOS}, {SOS}, {PB}")
        st = []; vrb, vone = V("vrb"), V("vone")
        st += L(f"""s_lshl_b32 {T1}, {MT}, 4
        s_add_u32 {T1}, {T1}, {J}
        v_lshl_add_u32 {vrb}, v0, 8, {T1}""")
        if mixed:
            self.ve = ve = V("ve")
            st += L(f"""s_lshl_b32 {T1}, {MT}, 9
            s_sub_u32 {T1}, {15*512}, {T1}
            s_lshl_b32 {T2}, {W}, 13
            s_add_u32 {T1}, {T1}, {T2}
            v_lshl_add_u32 {ve}, {self.lane}, 3, {T1}""")
            st.append(I(f"buffer_store_dwordx2 a[228:229], {ve}, {sE}, 0 offen sc1", tag="er", deadline=40))
        k = 0; span = (bar[7] - 60) / 34
        sent1 = False
        for n in range(9):
            st += po(n)
            for b in range(2):
                if n == 8 and b == 1: continue
                for tt in range(2):
                    e = int(40 + k*span); k += 1
                    if mixed and not sent1 and e > bar[2]:
                        sent1 = True
                        st += [I(f"v_mov_b32 {vone}, 1", earliest=bar[2]), I("WAITVM er"), I(f"buffer_store_byte {vone}, {vrb}, {sD}, 0 offen sc1")]
                    if P["prefill"]:
                        st.append(I(f"buffer_store_dwordx4 {aSENT}, {self.vp[b]}, {sWS}, {SOS} offen offset:{1024*tt} sc1", tag="pf", earliest=e, deadline=e + 24))
        st.append(I(f"v_mov_b32 {vone}, 2"))
        if P["prefill"]: st.append(I("WAITVM pf", earliest=bar[9] - 8, deadline=bar[9] - 1))
        st.append(I(f"buffer_store_byte {vone}, {vrb}, {sD}, 0 offen sc1", earliest=bar[9] + 1, deadline=bar[9] + 12))
        for n in range(9):
            for b in range(2):
                if n == 8 and b == 1: continue
                e = max(done[(("n", n), t, tt)] for t in (2*b, 2*b + 1) for tt in range(2)) + 3
                if b == 0:
                    p = po(n); p[0].earliest = e - 12; st += p
                for tt in range(2):
                    pk = V("pk", 4)
                    order = (0, 1) if b == 0 else (3, 2)
                    for z, t in enumerate(order):
                        a_ = acc[(("n", n), t, tt)]
                        for h in range(2):
                            st.append(I(f"v_cvt_pk_bf16_f32 {pk[2*z+h]}, {a_[2*h]}, {a_[2*h+1]}", earliest=e))
                    st.append(I(f"buffer_store_dwordx4 {pk}, {self.vp[b]}, {sWS}, {SOS} offen offset:{1024*tt} sc1", deadline=e + (30 if n else 44)))
        streams.append(st)
        if mixed: streams.append(self.ssm_stream(acc, done, firstuse, bar))
        st = []
        e0 = 864 + 110
        st += L(f"s_lshr_b32 {T3}, {TOFF[8]}, 1\ns_lshl_b32 {T0}, {AO}, 5\ns_add_u32 {T3}, {T3}, {T0}")
        st[0].earliest = e0
        self.res, r_ld, r_cp = self.resid(T3)
        r_cp[0].delay = 60
        st += r_ld + r_cp
        st += self.out_addr(T3)
        st += self.zero_pads()
        chk = self.ready_check("r2", 2, f"v_min_u32 %T%, 14, {self.i16}\ns_lshl_b32 {T0}, {MT}, 4\nv_add_u32 %T%, {T0}, %T%", 60)
        st += chk
        self.vl = V("vl")
        st.append(I(f"v_lshl_add_u32 {self.vl}, {self.lane}, 4, {M0B}", deadline=P["ldA"] - 4))
        e = P["ldA"]
        self.batches = self.owner_batches()
        for bt in self.batches:
            for x in self.batch_loads(bt):
                if x.kind == "vmem":
                    x.earliest = min(e, N - 2); e += P["ldStep"]
                st.append(x)
        streams.append(st)
        left = G.run_streams(streams)
        self.G = G
        print(f"  {self.role}: est cycles gemm1 {G.est_cycles(0, 864)} gemm2 {G.est_cycles(864)} left {len(left)}")
        code = [I("WAITVM g0"), I("s_barrier")] + self.stamp(2) + pre + G.linear()
        if P["stamps"]:
            idx = code.index(mf[864]); code[idx:idx] = self.stamp(3)
        code += self.stamp(4) + left
        own = [[acc[(("n", 8), 2 + t, tt)] for tt in range(2)] for t in range(2)]
        code += self.finish(self.batches, own, self.res)
        return code

    def ssm_stream(self, acc, done, firstuse, bar):
        V = lambda n, k=1: VR(n, k)
        st = []; gp = self.gp; scr = self.scr
        def cfma(dr, di, lr, li, xr, xi, ar, ai):
            return L(f"""v_fma_f32 {dr}, {lr}, {xr}, {ar}
            v_fma_f32 {di}, {lr}, {xi}, {ai}
            v_fma_f32 {dr}, -{li}, {xi}, {dr}
            v_fmac_f32 {di}, {li}, {xr}""")
        ea = V("ea")
        st += L(f"v_mul_u32_u24 {ea}, 384, {self.q}\nv_add_u32 {ea}, {scr}, {ea}")
        bu = {}
        for g in range(4):
            sd, gg = divmod(g, 2)
            e = max(done[(("d", sd), 2*gg + z, tt)] for z in range(2) for tt in range(2)) + 3
            spare = V("spare")[0]
            ee = [V("ee", 2), V("ee", 2)]
            for t in range(8):
                tt, r = divmod(t, 4)
                R = acc[(("d", sd), 2*gg, tt)][r]; Im = acc[(("d", sd), 2*gg + 1, tt)][r]
                o = L(f"""v_mul_f32 {spare}, {gp[g][2]}, {R}
                v_fma_f32 {spare}, -{gp[g][3]}, {Im}, {spare}
                v_mul_f32 {Im}, {gp[g][2]}, {Im}
                v_fmac_f32 {Im}, {gp[g][3]}, {R}""")
                o[0].earliest = e
                st += o
                bu[(g, t)] = (spare, Im); spare = R
                if t >= 1:
                    px = bu[(g, 0)] if t == 1 else (ee[t % 2][0], ee[t % 2][1])
                    d_ = ee[(t + 1) % 2]
                    st += cfma(d_[0], d_[1], gp[g][0], gp[g][1], px[0], px[1], *bu[(g, t)])
            st.append(I(f"ds_write_b64 {ea}, {ee[0]} offset:{128*g}"))
        eq = [V(f"eq{k}", 2) for k in range(4)]
        for k in range(4): st.append(I(f"ds_read_b64 {eq[k]}, {scr} offset:{512*k}"))
        s1, s2, s3 = V("s1", 2), V("s2", 2), V("s3", 2)
        l8, l32, l128, lw = self.l8, self.l32, self.l128, self.lw
        o = cfma(s1[0], s1[1], l8[0], l8[1], eq[0][0], eq[0][1], eq[1][0], eq[1][1]); o[0].delay = 6
        o += cfma(s2[0], s2[1], l8[0], l8[1], s1[0], s1[1], eq[2][0], eq[2][1])
        o += cfma(s3[0], s3[1], l8[0], l8[1], s2[0], s2[1], eq[3][0], eq[3][1])
        st += o
        wa = V("wa")
        st.append(I(f"ds_write_b64 {scr}, {s3} offset:2048", tag="ww"))
        st.append(I(f"v_lshlrev_b32 {wa}, 3, {self.lane}"))
        st.append(I(f"v_add_u32 {wa}, {SCR + 2048}, {wa}"))
        st.append(I("WAITLG ww", delay=3, deadline=bar[4] - 1))
        ww = [V(f"ww{k}", 2) for k in range(4)]
        for k in range(4): st.append(I(f"ds_read_b64 {ww[k]}, {wa} offset:{4096*k}", earliest=bar[4] + 1))
        u1, u2, ee = V("u1", 2), V("u2", 2), V("E", 2)
        o = cfma(u1[0], u1[1], l32[0], l32[1], ww[0][0], ww[0][1], ww[1][0], ww[1][1]); o[0].delay = 6
        o += cfma(u2[0], u2[1], l32[0], l32[1], u1[0], u1[1], ww[2][0], ww[2][1])
        o += cfma(ee[0], ee[1], l32[0], l32[1], u2[0], u2[1], ww[3][0], ww[3][1])
        st += o
        st.append(I(f"buffer_store_dwordx2 {ee}, {self.ve}, {sE}, 0 offen sc1", deadline=bar[4] + 36))
        pw = V("pw", 2)
        for k, src in enumerate((ww[0], u1, u2)):
            o = L(f"s_cmp_eq_u32 {W}, {k+1}\ns_cselect_b64 {MK[0]}, -1, 0"); o[1].glue = True
            st += o
            for z in range(2): st.append(I(f"v_cndmask_b32 {pw[z]}, {0 if k == 0 else pw[z]}, {src[z]}, {MK[0]}"))
        chk = self.ready_check("r1", 1, f"v_lshl_add_u32 %T%, {self.i16}, 4, {J}", 50)
        chk[0].earliest = 520
        st += chk
        vg = [V("vg0"), V("vg1")]
        st += L(f"""s_lshl_b32 {T0}, {MT}, 9
        s_sub_u32 {T0}, {16*512}, {T0}
        v_lshl_add_u32 {vg[0]}, {self.lane}, 3, {T0}
        v_add_u32 {vg[1]}, 4096, {vg[0]}""")
        ek = [V(f"ek{k}", 2) for k in range(15)]
        def eloads():
            return [I(f"buffer_load_dwordx2 {ek[k]}, {vg[k//8]}, {sE}, 0 offen offset:{(k%8)*512} sc1") for k in range(14, -1, -1)]
        el = eloads(); el[0].earliest = self.P.get("eld", 600); el[-1].deadline = el[0].earliest + 36
        for x in el[1:]: x.delay = 2
        st += el
        gg_ = [V("G", 2), V("G", 2)]
        def horner():
            o = []
            for k in range(13, -1, -1):
                px = ek[14] if k == 13 else gg_[(k + 1) % 2]
                o += cfma(gg_[k % 2][0], gg_[k % 2][1], l128[0], l128[1], px[0], px[1], ek[k][0], ek[k][1])
            return o
        o = horner(); o[0].delay = 40; st += o
        Gv = gg_[0]; lab = f"L{self.lab}_g"
        st.append(I(f"v_cmp_u_f32 vcc, {Gv[0]}, {Gv[1]}", deadline=self.P.get("eld", 600) + 125))
        br = I(f"s_cbranch_vccnz {lab}"); bk = I(f"{lab}_b:"); bk.glue = True
        st += [br, bk]
        self.extra[lab] = (L(f"{lab}:\ns_mov_b32 {CNT}, 0\n{lab}_l:\ns_sleep 2") + eloads() + L("s_waitcnt vmcnt(0)") + horner() +
            L(f"""v_cmp_u_f32 vcc, {Gv[0]}, {Gv[1]}
            s_nop 1
            s_cbranch_vccz {lab}_b
            s_add_u32 {CNT}, {CNT}, 1
            s_cmp_lt_u32 {CNT}, {self.P['spin']}
            s_cbranch_scc1 {lab}_l
            s_branch {lab}_b"""))
        cq = [V(f"cq{k}", 2) for k in range(4)]
        st += cfma(cq[0][0], cq[0][1], lw[0], lw[1], Gv[0], Gv[1], pw[0], pw[1])
        for k in range(1, 4):
            st += cfma(cq[k][0], cq[k][1], l8[0], l8[1], cq[k-1][0], cq[k-1][1], eq[k-1][0], eq[k-1][1])
        for k in range(4): st.append(I(f"ds_write_b64 {scr}, {cq[k]} offset:{512*k}"))
        cin = [V(f"cin{g}", 2) for g in range(4)]
        for g in range(4): st.append(I(f"ds_read_b64 {cin[g]}, {ea} offset:{128*g}", deadline=self.P.get("eld", 600) + 160))
        hw, hr, tq = V("hw"), V("hr"), V("tq")
        st += L(f"""s_lshl_b32 {T0}, {W}, 12
        s_add_u32 {T0}, {T0}, {SCR}
        v_lshl_add_u32 {hw}, {self.i16}, 6, {T0}
        v_lshl_add_u32 {hw}, {self.q}, 4, {hw}
        v_lshl_add_u32 {hr}, {self.i16}, 4, {T0}
        v_lshl_add_u32 {hr}, {self.q}, 9, {hr}""")
        for g in range(4):
            sd, gg = divmod(g, 2)
            pr, pi = V("hpr", 4), V("hpi", 4)
            for t in range(8):
                px = (cin[g][0], cin[g][1]) if t == 0 else bu[(g, t - 1)]
                br_, bi_ = bu[(g, t)]
                st += L(f"""v_fmac_f32 {br_}, {gp[g][0]}, {px[0]}
                v_fmac_f32 {bi_}, {gp[g][0]}, {px[1]}
                v_fma_f32 {br_}, -{gp[g][1]}, {px[1]}, {br_}
                v_fmac_f32 {bi_}, {gp[g][1]}, {px[0]}""")
                if t % 2 == 1:
                    st += L(f"""v_cvt_pk_bf16_f32 {pr[t//2]}, {bu[(g, t-1)][0]}, {br_}
                    v_cvt_pk_bf16_f32 {pi[t//2]}, -{bu[(g, t-1)][1]}, -{bi_}""")
            st.append(I(f"ds_write_b128 {hw}, {pr} offset:{1024*gg}"))
            st.append(I(f"ds_write_b128 {hw}, {pi} offset:{2048 + 1024*gg}", deadline=firstuse[("S", 0, 0, 0)] - 20 - 32*(3 - g)))
            if gg == 1:
                for part in range(2):
                    for tt in range(2):
                        for h in range(2):
                            st.append(I(f"ds_read_b64_tr_b16 {aHS(part, sd, tt, h)}, {hr} offset:{2048*part + 256*h + 8*tt}",
                                        deadline=firstuse[("S", 0, 0, 0)] - 10))
        return st

    def ready_check(self, name, val, addr, delay):
        t, rb = VR("rca"), VR("rcb"); lab = f"L{self.lab}_{name}"
        o = L(addr.replace("%T%", str(t)))
        ld = lambda: I(f"buffer_load_ubyte {rb}, {t}, {sD}, 0 offen sc1")
        o += [ld(), I(f"v_cmp_gt_u32 vcc, {val}, {rb}", delay=delay), I(f"s_cbranch_vccnz {lab}"), I(f"{lab}_b:")]
        o[-1].glue = True
        self.extra[lab] = (L(f"{lab}:\ns_mov_b32 {CNT}, 0\n{lab}_l:\ns_sleep 4") + [ld()] +
            L(f"""s_waitcnt vmcnt(0)
            v_cmp_gt_u32 vcc, {val}, {rb}
            s_nop 1
            s_cbranch_vccz {lab}_b
            s_add_u32 {CNT}, {CNT}, 1
            s_cmp_lt_u32 {CNT}, {self.P['spin']}
            s_cbranch_scc1 {lab}_l
            s_branch {lab}_b"""))
        return o

    def resid(self, sD0):
        V = lambda n, k=1: VR(n, k)
        va, vd, t = V("rva"), V("rvd"), V("rt")
        xr = [[V("rx", 2) for tt in range(2)] for _ in range(2)]; dk = [V("rd", 2), V("rd", 2)]
        ld = L(f"""v_and_b32 {t}, 12, {self.i16}
        v_add_u32 {t}, {self.i16}, {t}
        s_lshl_b32 {T0}, {MT}, 2
        s_add_u32 {T0}, {T0}, {W}
        s_lshl_b32 {T0}, {T0}, 5
        v_add_u32 {t}, {T0}, {t}
        v_mul_u32_u24 {t}, 1152, {t}
        s_lshl_b32 {T0}, {sD0}, 1
        v_lshl_add_u32 {vd}, {self.q}, 3, {T0}
        v_add_u32 {va}, {t}, {vd}
        s_mov_b32 {T0}, {4*1152}""")
        for tl in range(2):
            ld.append(I(f"global_load_dwordx2 {dk[tl]}, {vd}, s[84:85] offset:{32*tl}", delay=2))
            for tt in range(2):
                ld.append(I(f"buffer_load_dwordx2 {xr[tl][tt]}, {va}, {sX}, {T0 if tt else 0} offen offset:{32*tl}", delay=6))
        res = [[V("res", 4) for tt in range(2)] for _ in range(2)]
        cp = []
        for tl in range(2):
            df = V("rdf", 4)
            for r in range(4):
                cp.append(I(f"v_lshlrev_b32 {df[r]}, 16, {dk[tl][r//2]}" if r % 2 == 0 else f"v_and_b32 {df[r]}, {HI16}, {dk[tl][r//2]}"))
            for tt in range(2):
                for r in range(4):
                    u = V("ru"); x = res[tl][tt][r]
                    cp.append(I(f"v_lshlrev_b32 {x}, 16, {xr[tl][tt][r//2]}" if r % 2 == 0 else f"v_and_b32 {x}, {HI16}, {xr[tl][tt][r//2]}"))
                    cp += L(f"v_sub_f32 {u}, {x}, {self.mean[tt]}\nv_mul_f32 {u}, {u}, {self.rs[tt]}\nv_fmac_f32 {x}, {u}, {df[r]}")
        return res, ld, cp
    def out_addr(self, sD0):
        V = lambda n, k=1: VR(n, k)
        self.ow = ow = [V("owa"), V("owb")]; self.ord = ord_ = [V("ora"), V("orb")]; self.vo = vo = V("vo")
        t, u = V("ot"), V("ou")
        return L(f"""s_lshl_b32 {T0}, {W}, 12
        s_add_u32 {T0}, {T0}, {SCR}
        v_and_b32 {t}, 12, {self.i16}
        v_add_u32 {t}, {self.i16}, {t}
        v_lshl_add_u32 {t}, {t}, 7, {T0}
        v_and_b32 {u}, 7, {self.lane}
        v_xor_b32 {u}, {u}, {self.q}
        v_lshl_add_u32 {ow[0]}, {u}, 4, {t}
        v_xor_b32 {ow[1]}, 64, {ow[0]}
        v_bfe_u32 {t}, {self.lane}, 3, 2
        v_xor_b32 {t}, {t}, {self.lane}
        v_lshl_add_u32 {ord_[0]}, {t}, 4, {T0}
        v_xor_b32 {ord_[1]}, 64, {ord_[0]}
        s_lshl_b32 {T0}, {MT}, 2
        s_add_u32 {T0}, {T0}, {W}
        s_lshl_b32 {T0}, {T0}, 5
        v_lshrrev_b32 {t}, 3, {self.lane}
        v_add_u32 {t}, {T0}, {t}
        v_mul_u32_u24 {t}, 2304, {t}
        v_and_b32 {u}, 7, {self.lane}
        v_lshl_add_u32 {t}, {u}, 4, {t}
        s_lshl_b32 {T0}, {sD0}, 2
        v_add_u32 {vo}, {T0}, {t}""")
    def zero_pads(self, pads=(0, 42, 60, 66)):
        return [I(f"v_accvgpr_write_b32 a{68*tt + p + k}, 0") for tt in range(2) for p in pads for k in range(2)]
    def owner_batches(self):
        return [dict(name="a", base=2, slots=[(n, b) for n in range(1, 6) for b in range(2)]),
                dict(name="b", base=44, slots=[(n, b) for n in (6, 7) for b in range(2)]),
                dict(name="c", base=62, slots=[(8, 0)])]
    def batch_loads(self, bt):
        o = []
        for k, (n, b) in enumerate(bt["slots"]):
            if b == 0: o += L(f"s_sub_u32 {T2}, {UM1}, {n}\ns_and_b32 {T2}, {T2}, 7\ns_lshl_b32 {T2}, {T2}, 14")
            o += L(f"s_sub_u32 {SOL}, {Z1 if b else Z0}, {T2}")
            for tt in range(2):
                o.append(I(f"buffer_load_dwordx4 {areg(68*tt + bt['base'] + 4*k, 4)}, {self.vl}, {sL}, {SOL} offen offset:{1024*tt} sc1"))
        return o
    def finish(self, batches, own, res, uid=""):
        V = lambda n, k=1: VR(n, k)
        c = []; prev = None
        for bi, bt in enumerate(batches):
            lab = f"L{self.lab}_x{uid}{bt['name']}"
            cur = [[V("red", 4) for tt in range(2)] for _ in range(2)]
            c.append(I(f"{lab}_b:"))
            for k in range(len(bt["slots"]) + 1):
                for tt in range(2):
                    t = k % 2
                    src = cur[t][tt] if k >= 2 else (prev[t][tt] if prev else 0)
                    c.append(I(f"{MF} {cur[t][tt]}, {aSEL}, {areg(68*tt + bt['base'] - 2 + 4*k, 4)}, {src}"))
            if bi == 0 and own is not None:
                c.append(I(f"s_cbranch_scc0 {lab}_s"))
                c.insert(0, I("s_cmp_eq_u32 0, 0"))
                for t in range(2):
                    for tt in range(2):
                        for r in range(4): c.append(I(f"v_fmac_f32 {res[t][tt][r]}, {fb(LN2)}, {own[t][tt][r]}"))
                c.append(I(f"{lab}_s:")); c.append(I("s_nop 7"))
            c += L(f"""v_cmp_u_f32 vcc, {cur[0][0][0]}, {cur[0][1][0]}
            v_cmp_u_f32 {MK[0]}, {cur[1][0][0]}, {cur[1][1][0]}
            s_or_b64 vcc, vcc, {MK[0]}
            s_and_b64 vcc, vcc, {ACC}""")
            keep = [x for row in (prev or []) for x in row] + ([x for row in own for x in row] if bi == 0 and own else [])
            c.append(I(f"s_cbranch_scc1 {lab}", uses=keep))
            c += L(f"s_mov_b32 {CNT}, 0\ns_mov_b64 {ACC}, -1")
            self.extra[lab] = (L(f"{lab}:") + L(f"s_sleep {bt.get('sleep', 1)}") + self.batch_loads(bt) +
                L(f"""s_add_u32 {CNT}, {CNT}, 1
                s_cmp_lt_u32 {CNT}, {self.P['spin']}
                s_cselect_b64 {ACC}, -1, 0
                s_cmp_eq_u32 0, 1
                s_waitcnt vmcnt(0)
                s_branch {lab}_b"""))
            prev = cur
        c.insert(0, I(f"s_mov_b32 {CNT}, 0"))
        for tt in range(2):
            for t in range(2):
                for r in range(4): c.append(I(f"v_fmac_f32 {res[t][tt][r]}, {fb(LN2)}, {prev[t][tt][r]}"))
                c.append(I(f"ds_write_b128 {self.ow[t]}, {res[t][tt]} offset:{512*tt}"))
        o = [V("o", 4) for _ in range(4)]
        for k in range(4): c.append(I(f"ds_read_b128 {o[k]}, {self.ord[k % 2]} offset:{1024*k}"))
        for k in range(4):
            c += L(f"s_mov_b32 {T0}, {k*8*2304}\nbuffer_store_dwordx4 {o[k]}, {self.vo}, {sO}, {T0} offen")
        return c

    def helper(self):
        V = lambda n, k=1: VR(n, k)
        c = []
        self.vl = V("vl")
        c += L(f"""v_lshl_add_u32 {self.vl}, {self.lane}, 4, {M0B}
        s_mul_i32 {T1}, {MT}, {18*131072}
        s_add_u32 {T1}, {T1}, {PBASE}
        s_add_u32 s44, s44, {T1}
        s_addc_u32 s45, s45, 0
        s_lshl_b32 {TOFF[0]}, {T3}, 6
        s_add_u32 {TOFF[1]}, {TOFF[0]}, 32
        s_add_u32 {T1}, {T3}, 1
        s_sub_u32 {T2}, {T1}, 9
        s_min_u32 {T1}, {T1}, {T2}
        s_lshl_b32 {TOFF[2]}, {T1}, 6""")
        rs = []
        for h in range(3):
            res, ld, cp = self.resid(TOFF[h]); c += ld + cp; rs.append(res)
        c += self.zero_pads((0, 66))
        c += self.ready_check("r2", 2, f"v_min_u32 %T%, 14, {self.i16}\ns_lshl_b32 {T0}, {MT}, 4\nv_add_u32 %T%, {T0}, %T%", 0)
        c += self.stamp(2)
        for h in range(3):
            ao = h & 1
            c += L(f"s_mov_b32 {Z0}, {(14 + ao)*8192}\ns_mov_b32 {Z1}, {(15 - ao)*8192}")
            c += self.out_addr(TOFF[h])
            if h < 2:
                bts = [dict(name="a", base=2, slots=[(n, b) for n in range(1, 9) for b in range(2)], sleep=8)]
            else:
                c += self.zero_pads((42, 60)); bts = self.owner_batches(); bts[0]["sleep"] = 8
            for bt in (bts if h < 2 else bts[:1]): c += self.batch_loads(bt)
            fin = self.finish(bts, None, rs[h], uid=str(h))
            if h == 2:
                for bt in bts[1:]:
                    idx = [k for k, x in enumerate(fin) if x.text == f"L{self.lab}_x2{bt['name']}_b:"][0]
                    fin[idx:idx] = self.batch_loads(bt)
            c += fin + self.stamp(3 + h if h < 2 else 6)
            if h < 2: c += L("s_add_u32 s44, s44, 0x20000\ns_addc_u32 s45, s45, 0")
        return c

    def build(self):
        VR.all.clear()
        code = [I(f"L{self.lab}:")] + self.prologue()
        code += self.helper() if self.role == "helper" else self.main()
        if self.P["stamps"]:
            t = VR("stt")
            code += L("s_waitcnt vmcnt(0)") + self.stamp(5)
            code += L(f"""s_lshl_b32 {T0}, s2, 10
            s_add_u32 {T0}, {T0}, {STAMP}
            v_lshlrev_b32 {t}, 2, v0
            buffer_store_dword {self.vst}, {t}, {sWS}, {T0} offen""")
        code.append(I("s_endpgm", uses=["v0"]))
        lastw = {}
        for x in code:
            for y in getattr(x, "needs", []):
                for r in y.wr: assert lastw.get(r) is y, ("stale scalar for DMA", x.text, y.text)
            for r in x.wr: lastw[r] = x
        peak = regalloc(code, self.extra)
        rep = []
        code, auto = insert_waits(code, rep)
        code, nops = fix_hazards(code)
        print(f"  {self.role}: {len(code)} instr, vgpr peak {peak}, auto waits {auto}, hazard nops {nops}")
        for lab, blk in self.extra.items():
            b, _ = fix_hazards(blk)
            code += [b[0], I("s_nop 7")] + b[1:]
        return code

def generate(**kw):
    P = dict(DEF); P.update(kw)
    nm = {"P": 16, "Q": 8, "R": 4, "S": 2}[P["mapping"]]; lm = int(math.log2(nm)); ng = nm // 2; lg = int(math.log2(ng))
    K = NAME + "_kernel"
    hdr = open("cdna_kernels/" + NAME + ".s.ref").read().split("; Override launch")[0] if P.get("hdr", 1) else ""
    o = hdr + "; @launch grid=(256,1,1) block=(256,1,1) lds=163840\n"
    o += f'.amdgcn_target "amdgcn-amd-amdhsa--gfx950"\n.text\n.globl {K}\n.p2align 8\n.type {K},@function\n{K}:\n'
    e = ""
    if P["stamps"]: e += f"s_memrealtime s[{KA+30}:{KA+31}]\ns_waitcnt lgkmcnt(0)\n"
    e += f"""s_cmp_ge_u32 s2, 256
s_cbranch_scc1 Lend
s_load_dwordx16 s[{KA}:{KA+15}], s[0:1], 0
s_load_dwordx2 s[84:85], s[0:1], 64
s_load_dwordx8 s[88:95], s[0:1], 80
s_load_dwordx2 s[96:97], s[0:1], 112
v_lshrrev_b32 v1, 6, v0
s_and_b32 {T0}, s2, 7
v_readfirstlane_b32 {W}, v1
s_lshr_b32 {T1}, s2, 3
s_cmp_ge_u32 {T1}, 30
s_cbranch_scc1 Lhsel
s_and_b32 {T2}, {T0}, {ng-1}
s_mul_i32 {T2}, {T2}, 30
s_add_u32 {T2}, {T2}, {T1}
s_lshr_b32 {J}, {T2}, {lm}
s_and_b32 {T2}, {T2}, {nm-1}
s_lshr_b32 {T0}, {T0}, {lg}
s_lshl_b32 {T0}, {T0}, {lm}
s_add_u32 {MT}, {T0}, {T2}
s_cmp_lt_u32 {J}, 9
s_cbranch_scc1 LM
s_branch LF
Lhsel:
s_lshl_b32 {T0}, {T0}, 1
s_add_u32 {T0}, {T0}, {T1}
s_sub_u32 {MT}, {T0}, 30
s_mov_b32 {J}, 15
s_branch LH
Lend:
s_endpgm
"""
    o += e
    for role in ("helper", "mixed", "pure"):
        o += ".p2align 6\n" + "\n".join(x.text for x in Role(role, P).build()) + "\n"
    o += f""".section .rodata,"a"
.p2align 6
.amdhsa_kernel {K}
  .amdhsa_next_free_vgpr 512
  .amdhsa_next_free_sgpr 102
  .amdhsa_accum_offset 256
  .amdhsa_group_segment_fixed_size 0
  .amdhsa_kernarg_size 120
  .amdhsa_user_sgpr_count 2
  .amdhsa_user_sgpr_kernarg_segment_ptr 1
  .amdhsa_system_sgpr_workgroup_id_x 1
.end_amdhsa_kernel
"""
    return o

if __name__ == "__main__":
    out = sys.argv[1]; kw = {}
    for a in sys.argv[2:]:
        k, v = a.split("="); kw[k] = int(v) if v.lstrip("-").isdigit() else v
    open(out, "w").write(generate(**kw))
```

```python
import sys, struct, math
from asmgen import *

NAME = "parallel_sum__ssm_conv_s5__dense_activation_silu__prompt"
def fb(x): return "0x%08x" % struct.unpack("<I", struct.pack("<f", x))[0]
LOG2E = 1.4426950408889634; LN2 = 0.6931471805599453
PBASE = 0x100000; STAMP = 0x80000
SENT = 0x7F817F81
SCR = 147456
MF = "v_mfma_f32_16x16x32_bf16"

DEF = dict(mapping="Q", krot=1, durot=0, npre=12, lag=4, D=12, NB=12, stamps=0, prefill=1,
           ldA=1500, ldStep=8, spin=20000, hsleep=4, pstore=1)

sX, sW1, sW2, sB, sCR, sCI, sO, sWS, sD, sE, sL = [sreg(4*k + 4, 4) for k in range(11)]
J, MT, W, UM1, AO, M0B, SO0, SO1, SOS, SOL = [f"s{k}" for k in range(48, 58)]
KX = [f"s{k}" for k in range(58, 67)]
T0 = "s67"
KA = 68
DUO = [f"s{k}" for k in range(68, 74)]
TOFF = [f"s{k}" for k in range(74, 83)]
PB = "s83"
T1, T2 = "s86", "s87"
MK = ["s[88:89]", "s[90:91]", "s[92:93]"]
Z0, Z1 = "s94", "s95"
CNT = "s96"; HI16 = "s97"
ACC = "s[98:99]"
XB = "s100"; T3 = "s101"
FLIP = "s3"

def aXN(ks, tt): return areg(8*ks + 4*tt, 4)
RING = 144
aHS = lambda part, s, tt, h=None: areg(192 + 16*part + 8*s + 4*tt + (0 if h is None else 2*h), 4 if h is None else 2)
aSEL = areg(224, 4); aSENT = areg(228, 4)

class Role:
    def __init__(self, role, P):
        self.role = role; self.P = P; self.extra = {}; self.nst = 0
        self.lab = {"mixed": "M", "pure": "F", "helper": "H"}[role]
    def stamp(self, k):
        if not self.P["stamps"]: return []
        return L(f"s_memrealtime s[0:1]\ns_waitcnt lgkmcnt(0)\nv_writelane_b32 {self.vst}, s0, {k}")

    def prologue(self):
        P = self.P; role = self.role; mixed = role == "mixed"; helper = role == "helper"
        c = []
        V = lambda n, k=1: VR(n, k)
        self.lane = lane = V("lane")
        rho, sig, i16, q = V("rho"), V("sig"), V("i16"), V("q")
        self.i16, self.q = i16, q
        pn0, pn1 = V("pn0"), V("pn1")
        vx0, vx1 = V("vx0"), V("vx1")
        t0, t1, t2 = V("t0"), V("t1"), V("t2")
        if P["stamps"]:
            self.vst = V("vst")
            c += L(f"v_mov_b32 {self.vst}, 0\nv_writelane_b32 {self.vst}, s{KA+30}, 0")
        c += L(f"""
        s_add_u32 {T0}, {J}, {MT}
        s_mul_i32 {T1}, {T0}, 57
        s_lshr_b32 {T1}, {T1}, 9
        s_mul_i32 {T1}, {T1}, 9
        s_sub_u32 {T0}, {T0}, {T1}
        s_mul_i32 {T0}, {T0}, {128*P['krot']}
        s_mul_i32 {XB}, {MT}, {128*1152}
        s_lshl_b32 {M0B}, {W}, 11
        v_and_b32 {lane}, 63, v0
        v_lshrrev_b32 {rho}, 3, {lane}
        v_and_b32 {sig}, 7, {lane}
        v_lshrrev_b32 {t0}, 1, {rho}
        v_xor_b32 {t0}, {sig}, {t0}
        v_lshlrev_b32 {pn0}, 4, {t0}
        v_xor_b32 {pn1}, 64, {pn0}
        v_and_b32 {t0}, 4, {rho}
        v_add_u32 {t0}, {rho}, {t0}
        s_lshl_b32 {T1}, {W}, 5
        v_add_u32 {t0}, {T1}, {t0}
        v_mul_u32_u24 {t0}, 1152, {t0}
        v_add_u32 {vx0}, {t0}, {pn0}
        v_add_u32 {t0}, {16*1152-1024}, {t0}
        v_add_u32 {vx1}, {t0}, {pn1}
        """)
        for k in range(9):
            c += L(f"s_add_u32 {T1}, {T0}, {128*k}\ns_sub_u32 {T2}, {T1}, 1152\ns_min_u32 {KX[k]}, {T1}, {T2}")
        c += L(f"""
        s_mov_b32 s6, {2048*1152}
        s_mov_b32 s7, 0x20000
        s_waitcnt lgkmcnt(0)
        s_mov_b32 s4, s{KA}
        s_mov_b32 s5, s{KA+1}
        """)
        fill = []
        f = lambda s: fill.extend(L(s))
        if mixed:
            pl = [V("pLre"), V("pLim"), V("pLdt")]
            pv = V("pv")
            par_loads = L(f"""
            s_lshl_b32 {T1}, {J}, 7
            v_lshl_add_u32 {pv}, {lane}, 1, {T1}
            global_load_ushort {pl[0]}, {pv}, s[{KA+2}:{KA+3}]
            global_load_ushort {pl[1]}, {pv}, s[{KA+4}:{KA+5}]
            global_load_ushort {pl[2]}, {pv}, s[{KA+14}:{KA+15}]
            """)
        else: par_loads = []
        XA = [[V(f"xa{s}{g}") for g in range(3)] for s in range(2)]
        f(f"""
        v_and_b32 {i16}, 15, {lane}
        v_lshrrev_b32 {q}, 4, {lane}
        v_lshrrev_b32 {t0}, 1, {i16}
        v_xor_b32 {t0}, {q}, {t0}
        v_lshlrev_b32 {t0}, 4, {t0}
        v_lshl_add_u32 {t0}, {i16}, 7, {t0}
        v_add_u32 {XA[0][0]}, {M0B}, {t0}
        v_xor_b32 {XA[1][0]}, 64, {XA[0][0]}
        """)
        for g in (1, 2):
            for s in range(2): f(f"v_add_u32 {XA[s][g]}, {49152*g}, {XA[s][0]}")
        ones = V("ones", 4)
        for k in range(4): f(f"v_mov_b32 {ones[k]}, 0x3f803f80")
        nfirst = len(fill)
        if mixed:
            self.NA = NA = [[V(f"na{s}{g}") for g in range(3)] for s in range(2)]
            for s in range(2):
                for g in range(3): f(f"v_subrev_u32 {NA[s][g]}, {M0B}, {XA[s][g]}")
        def srd(b, src, nbytes): f(f"s_mov_b32 s{b}, s{src}\ns_mov_b32 s{b+1}, s{src+1}\ns_mov_b32 s{b+2}, {nbytes}\ns_mov_b32 s{b+3}, 0x20000")
        if not helper:
            srd(8, 88, 576*4608*2); srd(12, 90, 576*4608*2)
        if mixed:
            fill.extend(L(f"s_bitcmp1_b32 {W}, 0\ns_cselect_b32 s16, s{KA+8}, s{KA+6}\ns_cselect_b32 s17, s{KA+9}, s{KA+7}"))
            for x in fill[-2:]: x.glue = True
            f(f"s_mov_b32 s18, {576*1152}\ns_mov_b32 s19, 0x20000")
            srd(20, KA+10, 576*1152); srd(24, KA+12, 576*1152)
            fill.extend(L(f"s_lshl_b32 {T1}, {J}, 13\ns_add_u32 s40, s96, {T1}\ns_addc_u32 s41, s97, 0"))
            fill[-1].glue = True
            f("s_mov_b32 s42, 8192\ns_mov_b32 s43, 0x20000")
        srd(28, 92, 2048*576*4); srd(36, 94, 256); srd(32, 96, 0x4000000)
        f("s_mov_b32 s44, s96\ns_mov_b32 s45, s97\n" + f"s_mov_b32 s46, {15*8192}\ns_mov_b32 s47, 0x20000")
        f(f"s_mov_b32 {HI16}, 0xffff0000\ns_mov_b64 {ACC}, -1")
        if helper:
            f(f"s_mov_b32 {UM1}, 0\ns_mov_b32 {AO}, 0")
        else:
            f(f"s_add_u32 {T1}, {J}, 1\ns_lshr_b32 {UM1}, {T1}, 1\ns_and_b32 {AO}, {T1}, 1\ns_xor_b32 {FLIP}, {AO}, 1")
        f(f"s_sub_u32 {T1}, {MT}, 9\ns_min_u32 {T3}, {MT}, {T1}")
        if not helper:
            f(f"s_lshl_b32 {TOFF[0]}, {T3}, 7")
            for n in range(1, 9):
                f(f"""s_add_u32 {T1}, {UM1}, {n}
                s_and_b32 {T1}, {T1}, 7
                s_add_u32 {T1}, {T1}, {T3}
                s_add_u32 {T1}, {T1}, 1
                s_sub_u32 {T2}, {T1}, 9
                s_min_u32 {T1}, {T1}, {T2}
                s_lshl_b32 {TOFF[n]}, {T1}, 7""")
            f(f"""s_mul_i32 {T1}, {MT}, {18*131072}
            s_add_u32 {T1}, {T1}, {PBASE}
            s_lshl_b32 {T2}, {J}, 13
            s_sub_u32 {PB}, {T1}, {T2}
            s_add_u32 {PB}, {PB}, {14*8192}
            s_add_u32 {T2}, {J}, 3
            s_lshl_b32 {T2}, {T2}, 17
            s_add_u32 {T1}, {T1}, {T2}""")
            fill.extend(L(f"s_add_u32 s44, s44, {T1}\ns_addc_u32 s45, s45, 0")); fill[-1].glue = True
            f(f"s_lshl_b32 {T1}, {AO}, 13\ns_add_u32 {Z0}, {T1}, {14*8192}\ns_sub_u32 {Z1}, {15*8192}, {T1}")
            if mixed:
                f(f"s_lshl_b32 {T1}, {J}, 9")
                f(f"s_mul_i32 {DUO[0]}, {J}, {64*1152}\ns_add_u32 {DUO[1]}, {DUO[0]}, {32*1152}")
                for d in range(2, 6):
                    if P["durot"]:
                        f(f"s_add_u32 {T2}, {MT}, {d}\ns_and_b32 {T2}, {T2}, 3\ns_lshl_b32 {T2}, {T2}, 7\ns_add_u32 {DUO[d]}, {T1}, {T2}")
                    else: f(f"s_add_u32 {DUO[d]}, {T1}, {128*(d-2)}")
            else:
                f(f"s_mul_i32 {T1}, {J}, 768\ns_sub_u32 {T1}, {T1}, {768*9 - 4608}")
                if P["durot"]:
                    f(f"s_mul_i32 {T2}, {MT}, 43\ns_lshr_b32 {T2}, {T2}, 8\ns_mul_i32 {T2}, {T2}, 6\ns_sub_u32 {T0}, {MT}, {T2}")
                for d in range(6):
                    if P["durot"]:
                        f(f"s_add_u32 {T2}, {T0}, {d}\ns_sub_u32 {SO1}, {T2}, 6\ns_min_u32 {T2}, {T2}, {SO1}\ns_lshl_b32 {T2}, {T2}, 7\ns_add_u32 {DUO[d]}, {T1}, {T2}")
                    else: f(f"s_add_u32 {DUO[d]}, {T1}, {128*d}")
            rr = V("rr")
            self.vw1 = vw1 = [V("vw1a"), V("vw1b")]; self.vw2 = vw2 = [V("vw2a"), V("vw2b")]
            f(f"""s_lshl_b32 {T1}, {W}, 4
            v_add_u32 {rr}, {T1}, {rho}
            v_and_b32 {t0}, 2, {rho}
            v_xor_b32 {t0}, {sig}, {t0}
            v_lshlrev_b32 {t0}, 4, {t0}
            v_mul_u32_u24 {t1}, 9216, {rr}
            v_add_u32 {vw1[0]}, {t1}, {t0}
            v_xor_b32 {t0}, 64, {t0}
            v_add_u32 {t1}, {8*9216-1024}, {t1}
            v_add_u32 {vw1[1]}, {t1}, {t0}
            v_and_b32 {t0}, 6, {rho}
            v_xor_b32 {t0}, {sig}, {t0}
            s_lshl_b32 {T1}, {FLIP}, 2
            v_xor_b32 {t0}, {T1}, {t0}
            v_lshlrev_b32 {t0}, 4, {t0}
            v_mul_u32_u24 {t1}, 1152, {rr}
            v_add_u32 {vw2[0]}, {t1}, {t0}
            v_add_u32 {vw2[1]}, {8*1152-1024}, {vw2[0]}""")
            if mixed:
                self.vb = vb = [V("vba"), V("vbb")]; self.vc = vc = [V("vca"), V("vcb")]
                f(f"""s_lshr_b32 {T1}, {W}, 1
                s_lshl_b32 {T1}, {T1}, 4
                v_add_u32 {t1}, {T1}, {rho}
                v_mul_u32_u24 {t1}, 1152, {t1}
                v_add_u32 {vb[0]}, {t1}, {pn0}
                v_add_u32 {t1}, {8*1152-1024}, {t1}
                v_add_u32 {vb[1]}, {t1}, {pn1}
                s_lshl_b32 {T1}, {FLIP}, 5
                v_xor_b32 {t1}, {T1}, {rr}
                v_mul_u32_u24 {t1}, 1152, {t1}
                s_lshl_b32 {T1}, {J}, 7
                v_add_u32 {t1}, {T1}, {t1}
                v_add_u32 {vc[0]}, {t1}, {pn0}
                v_add_u32 {t1}, {8*1152-1024}, {t1}
                v_add_u32 {vc[1]}, {t1}, {pn1}""")
            self.TA = TA = [[V(f"ta{i}{g}") for g in range(3)] for i in range(4)]
            f(f"""v_bfe_u32 {t0}, {lane}, 2, 2
            v_lshl_add_u32 {t0}, {q}, 3, {t0}
            v_lshlrev_b32 {t0}, 7, {t0}
            v_bfe_u32 {t1}, {lane}, 3, 2
            v_lshl_add_u32 {t0}, {t1}, 5, {t0}
            v_and_b32 {t1}, 3, {lane}
            v_lshl_add_u32 {TA[0][0]}, {t1}, 3, {t0}""")
            for i in range(1, 4): f(f"v_xor_b32 {TA[i][0]}, {32*i}, {TA[0][0]}")
            for g in (1, 2):
                for i in range(4): f(f"v_add_u32 {TA[i][g]}, {49152*g}, {TA[i][0]}")
            self.vp = vp = [V("vpa"), V("vpb")]
            f(f"""v_lshl_add_u32 {t0}, {lane}, 4, {M0B}
            s_lshl_b32 {T1}, {FLIP}, 17
            v_add_u32 {vp[0]}, {T1}, {t0}
            v_xor_b32 {vp[1]}, 0x20000, {vp[0]}
            v_mov_b32 {t0}, {hex(SENT)}""")
            for k in range(4): f(f"v_accvgpr_write_b32 a{228+k}, {t0}")
        f(f"""v_lshrrev_b32 {t0}, 2, {i16}
        v_cmp_eq_u32 {MK[0]}, {t0}, {q}
        v_and_b32 {t1}, 1, {lane}
        v_lshlrev_b32 {t1}, 4, {t1}
        v_mov_b32 {t2}, 0x3f80
        v_lshlrev_b32 {t2}, {t1}, {t2}
        v_cndmask_b32 {t2}, 0, {t2}, {MK[0]}
        v_and_b32 {t1}, 2, {lane}
        v_cmp_eq_u32 {MK[0]}, 0, {t1}
        v_cndmask_b32 {t1}, 0, {t2}, {MK[0]}
        v_cndmask_b32 {t2}, {t2}, 0, {MK[0]}
        v_accvgpr_write_b32 a224, {t1}
        v_accvgpr_write_b32 a225, {t2}
        v_accvgpr_write_b32 a226, {t1}
        v_accvgpr_write_b32 a227, {t2}""")
        bp = V("bp")
        f(f"""v_lshl_add_u32 {bp}, {t0}, 4, {i16}
        v_lshlrev_b32 {bp}, 2, {bp}
        v_and_b32 {t1}, 3, {lane}
        v_cmp_eq_u32 {MK[0]}, 1, {t1}
        v_cmp_eq_u32 {MK[1]}, 2, {t1}
        v_cmp_eq_u32 {MK[2]}, 3, {t1}""")
        self.scr = scr = V("scr")
        f(f"s_lshl_b32 {T1}, {W}, 12\ns_add_u32 {T1}, {T1}, {SCR}\nv_lshl_add_u32 {scr}, {lane}, 3, {T1}")
        if mixed: fill += self.ssm_params(pl)
        self.xv = xv = [[V(f"x{ks}_{tt}", 4) for tt in range(2)] for ks in range(18)]
        accS = [V("accS0", 4), V("accS1", 4)]; accQ = [V("accQ0", 4), V("accQ1", 4)]
        self.mean = mean = [V("mean0"), V("mean1")]; self.rs = rs = [V("rs0"), V("rs1")]
        kb = [V("kb0", 2), V("kb1", 2)]
        def stats_fin(tt):
            a, b = V("sa"), V("sb")
            o = L(f"""
            v_cndmask_b32 {a}, {accQ[tt][0]}, {accQ[tt][1]}, {MK[0]}
            v_cndmask_b32 {a}, {a}, {accQ[tt][2]}, {MK[1]}
            v_cndmask_b32 {a}, {a}, {accQ[tt][3]}, {MK[2]}
            ds_bpermute_b32 {a}, {bp}, {a}
            v_mul_f32 {b}, {fb(1/576)}, {accS[tt][0]}
            v_cvt_pk_bf16_f32 {mean[tt]}, {b}, {b}
            v_and_b32 {mean[tt]}, {HI16}, {mean[tt]}
            v_mul_f32 {b}, {b}, {b}
            v_mul_f32 {a}, {fb(1/576)}, {a}
            v_sub_f32 {a}, {a}, {b}
            v_max_f32 {a}, 0, {a}
            v_cvt_pk_bf16_f32 {a}, {a}, {a}
            v_and_b32 {a}, {HI16}, {a}
            v_add_f32 {a}, {fb(1e-5)}, {a}
            v_cvt_pk_bf16_f32 {a}, {a}, {a}
            v_and_b32 {a}, {HI16}, {a}
            v_sqrt_f32 {a}, {a}
            v_cvt_pk_bf16_f32 {a}, {a}, {a}
            v_and_b32 {a}, {HI16}, {a}
            v_rcp_f32 {rs[tt]}, {a}
            """)
            if not helper:
                o += L(f"v_mul_f32 {kb[tt][0]}, {fb(LOG2E)}, {rs[tt]}\nv_mul_f32 {kb[tt][1]}, {mean[tt]}, {kb[tt][0]}")
            return o
        def norm_unit(tt, b):
            o = []; tm = [V("ntm", 2) for _ in range(8)]
            regs = [xv[2*b + s][tt][k] for s in range(2) for k in range(4)]
            for k in range(8): o += L(f"v_lshlrev_b32 {tm[k][0]}, 16, {regs[k]}\nv_and_b32 {tm[k][1]}, {HI16}, {regs[k]}")
            for k in range(8): o += L(f"v_pk_fma_f32 {tm[k]}, {tm[k]}, {kb[tt]}, {kb[tt]} op_sel:[0,0,1] op_sel_hi:[1,0,1] neg_lo:[0,0,1] neg_hi:[0,0,1]")
            for k in range(8): o += L(f"v_cvt_pk_bf16_f32 {regs[k]}, {tm[k][0]}, {tm[k][1]}")
            return o
        lag = P["lag"]; npre = 0 if helper else P["npre"]
        nsteps = max(18 + npre, 18 + lag + 1)
        norm_q = []
        nfill_steps = 9 + lag
        rest = fill[nfirst:]; per = -(-len(rest) // (nfill_steps - 1)); fi = 0
        for k in range(nsteps):
            if k < 18:
                tt, b = divmod(k, 9)
                c += L(f"s_add_u32 m0, {M0B}, {k*8192}")
                if k == 9: c += L(f"s_add_u32 {XB}, {XB}, {4*1152}")
                c += L(f"s_add_u32 {SO0}, {XB}, {KX[b]}")
                c += [I(f"buffer_load_dwordx4 {vx0}, {sX}, {SO0} offen lds"), I(f"buffer_load_dwordx4 {vx1}, {sX}, {SO0} offen offset:1024 lds", tag=f"x{k}")]
                if k == 0: c += par_loads + fill[:nfirst]
            elif k - 18 < npre:
                sal, dm = self.dma_chunk(k - 18)
                c += sal + dm
            u = k - lag
            if 0 <= u < 18:
                tt, b = divmod(u, 9)
                c.append(I(f"WAITVM x{u}"))
                for s in range(2):
                    c.append(I(f"ds_read_b128 {xv[2*b+s][tt]}, {XA[s][u//6]} offset:{(u%6)*8192}"))
            u = k - lag - 1
            if 0 <= u < 18:
                tt, b = divmod(u, 9)
                for s in range(2):
                    x = xv[2*b+s][tt]; first = b == 0 and s == 0
                    c.append(I(f"{MF} {accS[tt]}, {ones}, {x}, {0 if first else accS[tt]}"))
                    c.append(I(f"{MF} {accQ[tt]}, {x}, {x}, {0 if first else accQ[tt]}"))
            if 1 <= k < nfill_steps:
                e = min(len(rest), fi + per)
                while e < len(rest) and getattr(rest[e], "glue", False): e += 1
                c += rest[fi:e]; fi = e
            if norm_q and u != 17: c += norm_q.pop(0)
            if u in (8, 17):
                tt = u // 9
                if u == 8: assert fi >= len(rest)
                if u == 17:
                    while norm_q: c += norm_q.pop(0)
                c += stats_fin(tt)
                if u == 17: c += self.stamp(1)
                if not helper: norm_q = [norm_unit(tt, b) for b in range(9)]
        while norm_q: c += norm_q.pop(0)
        return c

    def ssm_params(self, pl):
        V = lambda n, k=1: VR(n, k)
        lre, lim, ldt = pl
        par = V("par", 4); a, th, t, u = V("pa"), V("pth"), V("pt"), V("pu")
        o = L(f"""
        v_lshlrev_b32 {lre}, 16, {lre}
        v_lshlrev_b32 {lim}, 16, {lim}
        v_lshlrev_b32 {ldt}, 16, {ldt}
        v_mul_f32 {ldt}, {fb(LOG2E)}, {ldt}
        v_exp_f32 {ldt}, {ldt}
        v_cvt_pk_bf16_f32 {ldt}, {ldt}, {ldt}
        v_and_b32 {ldt}, {HI16}, {ldt}
        v_mul_f32 {a}, {ldt}, {lre}
        v_mul_f32 {th}, {ldt}, {lim}
        v_mul_f32 {a}, {fb(LOG2E)}, {a}
        v_exp_f32 {a}, {a}
        v_mul_f32 {th}, {fb(0.5/math.pi)}, {th}
        v_rndne_f32 {t}, {th}
        v_sub_f32 {th}, {th}, {t}
        v_cos_f32 {t}, {th}
        v_sin_f32 {u}, {th}
        v_mul_f32 {par[0]}, {a}, {t}
        v_mul_f32 {par[1]}, {a}, {u}
        v_mul_f32 {t}, {lre}, {lre}
        v_fmac_f32 {t}, {lim}, {lim}
        v_rcp_f32 {t}, {t}
        v_add_f32 {a}, -1.0, {par[0]}
        v_add_f32 {t}, {t}, {t}
        v_mul_f32 {u}, {a}, {lre}
        v_fmac_f32 {u}, {par[1]}, {lim}
        v_mul_f32 {par[2]}, {u}, {t}
        v_mul_f32 {u}, {par[1]}, {lre}
        v_fma_f32 {u}, -{a}, {lim}, {u}
        v_mul_f32 {par[3]}, {u}, {t}
        """)
        wa, ra = V("pwa"), V("pra")
        self.gp = gp = [V(f"gp{g}", 4) for g in range(4)]
        o += L(f"""
        v_lshlrev_b32 {t}, 3, {self.lane}
        v_add_u32 {wa}, {self.scr}, {t}
        v_lshlrev_b32 {t}, 8, {self.q}
        v_sub_u32 {ra}, {wa}, {t}
        ds_write_b128 {wa}, {par}
        """)
        for g in range(4): o.append(I(f"ds_read_b128 {gp[g]}, {ra} offset:{256*g}"))
        def sq(dst, src):
            return L(f"""v_mul_f32 {t}, {src[1]}, {src[1]}
            v_add_f32 {u}, {src[0]}, {src[0]}
            v_fma_f32 {t}, {src[0]}, {src[0]}, -{t}
            v_mul_f32 {dst[1]}, {u}, {src[1]}
            v_mov_b32 {dst[0]}, {t}""")
        self.l8, self.l32, self.l128, self.lw = l8, l32, l128, lw = V("l8", 2), V("l32", 2), V("l128", 2), V("lw", 2)
        l64 = V("l64", 2)
        o += sq(l8, par) + sq(l8, l8) + sq(l8, l8) + sq(l32, l8) + sq(l32, l32) + sq(l64, l32) + sq(l128, l64)
        g1 = L(f"s_bitcmp1_b32 {W}, 0\ns_cselect_b64 vcc, -1, 0\nv_cndmask_b32 {a}, 1.0, {l32[0]}, vcc\nv_cndmask_b32 {th}, 0, {l32[1]}, vcc")
        g2 = L(f"s_bitcmp1_b32 {W}, 1\ns_cselect_b64 vcc, -1, 0\nv_cndmask_b32 {l64[0]}, 1.0, {l64[0]}, vcc\nv_cndmask_b32 {l64[1]}, 0, {l64[1]}, vcc")
        for g in (g1, g2):
            for x in g[1:]: x.glue = True
        o += g1 + g2
        o += L(f"""v_mul_f32 {lw[0]}, {a}, {l64[0]}
        v_fma_f32 {lw[0]}, -{th}, {l64[1]}, {lw[0]}
        v_mul_f32 {lw[1]}, {a}, {l64[1]}
        v_fmac_f32 {lw[1]}, {th}, {l64[0]}""")
        return o

    def kblock(self, c):
        if self.role == "pure": return ("F", c)
        return [("F", 2), ("F", 3), ("F", 4), ("S", 0), ("S", 1), ("F", 5)][c]
    def chunk_type(self, ch):
        if ch < 54: return "N" if (self.role == "mixed" and ch < 18) else "T1"
        return "T2" if self.kblock((ch - 54) % 6)[0] == "F" else "N"
    def dma_chunk(self, ch):
        so = SO0 if ch % 2 == 0 else SO1
        sal = L(f"s_add_u32 m0, {M0B}, {(ch % 18)*8192}")
        if ch < 54:
            d, c = divmod(ch, 9)
            if self.chunk_type(ch) == "N":
                sal += L(f"s_add_u32 {so}, {DUO[d]}, {KX[c]}"); v, srd = self.vb, sB
            else:
                sal += L(f"s_mul_i32 {so}, {KX[c]}, 4608\ns_add_u32 {so}, {so}, {DUO[d]}"); v, srd = self.vw1, sW1
        else:
            n, c = divmod(ch - 54, 6)
            kind, d = self.kblock(c)
            if kind == "F":
                sal += L(f"s_mul_i32 {so}, {DUO[d]}, 576\ns_add_u32 {so}, {so}, {TOFF[n]}"); v, srd = self.vw2, sW2
            else:
                sal += L(f"s_mul_i32 {so}, {TOFF[n]}, 576"); v, srd = self.vc, (sCR if d == 0 else sCI)
        sal = sal[1:] + sal[:1]
        dm = [I(f"buffer_load_dwordx4 {v[0]}, {srd}, {so} offen lds", tag=f"g{ch//6}"),
              I(f"buffer_load_dwordx4 {v[1]}, {srd}, {so} offen offset:1024 lds", tag=f"g{ch//6}")]
        for x in dm: x.needs = [sal[-1], sal[-2]]
        return sal, dm
    def frag_reads(self, f, ch, tile, s):
        r = RING + 4*(f % self.P["NB"]); g = (ch // 6) % 3; base = (ch % 6)*8192
        ty = self.chunk_type(ch)
        if ty == "N":
            return [I(f"ds_read_b128 {areg(r, 4)}, {self.NA[s][g]} offset:{base + tile*2048}", tag=f"f{f}")]
        hs = 512 if ty == "T1" else 2048
        return [I(f"ds_read_b64_tr_b16 {areg(r + 2*h, 2)}, {self.TA[tile][g]} offset:{base + s*4096 + h*hs}", tag=f"f{f}") for h in range(2)]

    def main(self):
        P = self.P; mixed = self.role == "mixed"; D = P["D"]
        V = lambda n, k=1: VR(n, k)
        pairs = []
        for gam in range(9):
            chs = list(range(6*gam, 6*gam + 6))
            for d in sorted(set(ch // 9 for ch in chs)):
                seg = [ch for ch in chs if ch // 9 == d]
                pairs += [(ch, t) for t in range(4) for ch in seg]
        for n in range(9):
            chs = list(range(54 + 6*n, 60 + 6*n))
            if n == 0: pairs += [(ch, t) for ch in chs for t in range(4)]
            else: pairs += [(ch, t) for t in range(4) for ch in chs]
        acc = {}; done = {}; firstuse = {}
        self.H = H = {(d, a, tt): V(f"H{d}{a}{tt}", 4) for d in range(6) for a in range(2) for tt in range(2)}
        mf = []; frags = []
        prev = None; tfirst = 0
        for k, (ch, t) in enumerate(pairs):
            unit = ("d", ch // 9) if ch < 54 else ("n", (ch - 54)//6)
            tfirst = (1 - tfirst) if prev == (unit, t) else 0
            prev = (unit, t)
            frags += [(ch, t, 0), (ch, t, 1)]
            for tt in (tfirst, 1 - tfirst):
                for s in range(2):
                    key = (unit, t, tt)
                    new = key not in acc
                    if new: acc[key] = V(f"acc{unit[0]}{unit[1]}_{t}{tt}", 4)
                    fr = areg(RING + 4*((2*k + s) % P["NB"]), 4)
                    if ch < 54:
                        ks = 2*(ch % 9) + s
                        o = self.xv[ks][tt] if ch < 9 else aXN(ks, tt)
                        okey = ("x", ks, tt, ch < 9)
                    else:
                        kind, d = self.kblock((ch - 54) % 6)
                        o = H[(d, s, tt)] if kind == "F" else aHS(d, s, tt)
                        okey = (kind, d, s, tt)
                    firstuse.setdefault(okey, len(mf))
                    a_, b_ = (o, fr) if (ch < 54 and self.chunk_type(ch) == "N") else (fr, o)
                    mf.append(I(f"{MF} {acc[key]}, {a_}, {b_}, {0 if new else acc[key]}"))
                    done[key] = len(mf) - 1
        G = Gaps(mf); N = len(mf)
        pre = []
        for f, (ch, t, s) in enumerate(frags):
            for h, rd in enumerate(self.frag_reads(f, ch, t, s)):
                g = 2*f + h - D
                if g < 0: pre.append(rd)
                else: G.put(g, rd)
        for k in range(1, len(pairs)): G.put(4*k - 1, I(f"WAITLG f{2*k+1}"))
        bar = {}
        for gam in range(1, 18):
            g = 96*gam - D; bar[gam] = g
            G.put(g - 2, I(f"WAITVM g{gam}")); G.put(g, I("s_barrier"))
        for ch in range(P["npre"], 108):
            gam = ch // 6
            if ch < 18:
                k = ch - P["npre"]; step = 96 // (18 - P["npre"]) // 4 * 4
                if ch < 12: step = min(step, 8)
                g0 = k*step if ch < 12 or P["npre"] >= 12 else (12 - P["npre"])*8 + (ch - 12)*8
                half = step // 2
            else:
                g0 = 96*(gam - 2) + 16*(ch % 6); half = 8
            sal, dm = self.dma_chunk(ch)
            g = g0
            for x in sal: g = G.put_salu(g, x)
            g = G.put_mem(g + 1, dm[0]); G.put_mem(g + max(1, min(half, 6)), dm[1])
        streams = []
        st = []
        for ks in range(18):
            for tt in range(2):
                for k in range(4):
                    st.append(I(f"v_accvgpr_write_b32 a{8*ks+4*tt+k}, {self.xv[ks][tt][k]}", deadline=min(150, firstuse[("x", ks, tt, False)] - 2)))
        streams.append(st)
        els = []
        for key in sorted([k for k in acc if k[0][0] == "d" and not (mixed and k[0][1] < 2)], key=lambda k: done[k]):
            (_, d), t, tt = key
            dl = min(firstuse[("F", d, t // 2, tt)] - 2, 144*(d + 2) + 30*t)
            for r in range(4): els.append((acc[key][r], H[(d, t // 2, tt)][2*(t % 2) + r // 2], done[key] + 3, dl))
        st = []; n = len(els); tm = [V("stm") for _ in range(n)]
        for i in range(n + 3):
            if i < n: st.append(I(f"v_exp_f32 {tm[i]}, -{els[i][0]}", earliest=els[i][2]))
            j = i - 3
            if 0 <= j < n: st.append(I(f"v_mul_f32 {tm[j]}, {tm[j]}, {els[j][0]}"))
            j = i - 2
            if 0 <= j < n: st.append(I(f"v_rcp_f32 {tm[j]}, {tm[j]}"))
            j = i - 1
            if 0 <= j < n: st.append(I(f"v_add_f32 {tm[j]}, 1.0, {tm[j]}"))
            j = i - 3
            if 0 <= j < n and j % 2 == 1: st.append(I(f"v_cvt_pk_bf16_f32 {els[j][1]}, {tm[j-1]}, {tm[j]}", deadline=els[j][3]))
        streams.append(st)
        st = []; q512 = V("q512")
        st.append(I(f"v_lshlrev_b32 {q512}, 9, {self.q}", earliest=bar[7]))
        for g in range(3):
            for i in range(4):
                st.append(I(f"v_sub_u32 {self.TA[i][g]}, {self.TA[i][g]}, {q512}", earliest=bar[7 + g], deadline=bar[9 + g] - 2))
        streams.append(st)
        def po(n):
            if n == 0: return L(f"s_mov_b32 {SOS}, {PB}")
            return L(f"s_add_u32 {SOS}, {UM1}, {n}\ns_and_b32 {SOS}, {SOS}, 7\ns_add_u32 {SOS}, {SOS}, 1\ns_lshl_b32 {SOS}, {SOS}, 18\ns_add_u32 {SOS}, {SOS}, {PB}")
        st = []; vrb, vone = V("vrb"), V("vone")
        st += L(f"""s_lshl_b32 {T1}, {MT}, 4
        s_add_u32 {T1}, {T1}, {J}
        v_lshl_add_u32 {vrb}, v0, 8, {T1}""")
        if mixed:
            self.ve = ve = V("ve")
            st += L(f"""s_lshl_b32 {T1}, {MT}, 9
            s_sub_u32 {T1}, {15*512}, {T1}
            s_lshl_b32 {T2}, {W}, 13
            s_add_u32 {T1}, {T1}, {T2}
            v_lshl_add_u32 {ve}, {self.lane}, 3, {T1}""")
            st.append(I(f"buffer_store_dwordx2 a[228:229], {ve}, {sE}, 0 offen sc1", tag="er", deadline=40))
        k = 0; span = (bar[7] - 60) / 34
        sent1 = False
        for n in range(9):
            st += po(n)
            for b in range(2):
                if n == 8 and b == 1: continue
                for tt in range(2):
                    e = int(40 + k*span); k += 1
                    if mixed and not sent1 and e > bar[2]:
                        sent1 = True
                        st += [I(f"v_mov_b32 {vone}, 1", earliest=bar[2]), I("WAITVM er"), I(f"buffer_store_byte {vone}, {vrb}, {sD}, 0 offen sc1")]
                    if P["prefill"]:
                        st.append(I(f"buffer_store_dwordx4 {aSENT}, {self.vp[b]}, {sWS}, {SOS} offen offset:{1024*tt} sc1", tag="pf", earliest=e, deadline=e + 24))
        st.append(I(f"v_mov_b32 {vone}, 2"))
        if P["prefill"]: st.append(I("WAITVM pf", earliest=bar[9] - 8, deadline=bar[9] - 1))
        st.append(I(f"buffer_store_byte {vone}, {vrb}, {sD}, 0 offen sc1", earliest=bar[9] + 1, deadline=bar[9] + 12))
        for n in range(9):
            for b in range(2):
                if n == 8 and b == 1: continue
                e = max(done[(("n", n), t, tt)] for t in (2*b, 2*b + 1) for tt in range(2)) + 3
                if b == 0:
                    p = po(n); p[0].earliest = e - 12; st += p
                for tt in range(2):
                    pk = V("pk", 4)
                    order = (0, 1) if b == 0 else (3, 2)
                    for z, t in enumerate(order):
                        a_ = acc[(("n", n), t, tt)]
                        for h in range(2):
                            st.append(I(f"v_cvt_pk_bf16_f32 {pk[2*z+h]}, {a_[2*h]}, {a_[2*h+1]}", earliest=e))
                    if P["pstore"]: st.append(I(f"buffer_store_dwordx4 {pk}, {self.vp[b]}, {sWS}, {SOS} offen offset:{1024*tt} sc1", deadline=e + (30 if n else 44)))
        streams.append(st)
        if mixed: streams.append(self.ssm_stream(acc, done, firstuse, bar))
        st = []
        e0 = 864 + 110
        st += L(f"s_lshr_b32 {T3}, {TOFF[8]}, 1\ns_lshl_b32 {T0}, {AO}, 5\ns_add_u32 {T3}, {T3}, {T0}")
        st[0].earliest = e0
        self.res, r_ld, r_cp = self.resid(T3)
        r_cp[0].delay = 60
        st += r_ld + r_cp
        st += self.out_addr(T3)
        st += self.zero_pads()
        chk = self.ready_check("r2", 2, f"v_min_u32 %T%, 14, {self.i16}\ns_lshl_b32 {T0}, {MT}, 4\nv_add_u32 %T%, {T0}, %T%", 60)
        st += chk
        self.vl = V("vl")
        st.append(I(f"v_lshl_add_u32 {self.vl}, {self.lane}, 4, {M0B}", deadline=P["ldA"] - 4))
        e = P["ldA"]
        self.batches = self.owner_batches()
        for bt in self.batches:
            for x in self.batch_loads(bt):
                if x.kind == "vmem":
                    x.earliest = min(e, N - 2); e += P["ldStep"]
                st.append(x)
        streams.append(st)
        left = G.run_streams(streams)
        self.G = G
        print(f"  {self.role}: est cycles gemm1 {G.est_cycles(0, 864)} gemm2 {G.est_cycles(864)} left {len(left)}")
        code = [I("WAITVM g0"), I("s_barrier")] + self.stamp(2) + pre + G.linear()
        if P["stamps"]:
            idx = code.index(mf[864]); code[idx:idx] = self.stamp(3)
            if P["stamps"] > 1:
                for gam in range(1, 18):
                    idx = code.index(mf[bar[gam] - 2]); code[idx:idx] = self.stamp(30 + gam)
                    idx = code.index(mf[bar[gam] + 1]); code[idx:idx] = self.stamp(8 + gam)
        code += self.stamp(4) + left
        own = [[acc[(("n", 8), 2 + t, tt)] for tt in range(2)] for t in range(2)]
        code += self.finish(self.batches, own, self.res)
        return code

    def ssm_stream(self, acc, done, firstuse, bar):
        V = lambda n, k=1: VR(n, k)
        st = []; gp = self.gp; scr = self.scr
        def cfma(dr, di, lr, li, xr, xi, ar, ai):
            return L(f"""v_fma_f32 {dr}, {lr}, {xr}, {ar}
            v_fma_f32 {di}, {lr}, {xi}, {ai}
            v_fma_f32 {dr}, -{li}, {xi}, {dr}
            v_fmac_f32 {di}, {li}, {xr}""")
        ea = V("ea")
        st += L(f"v_mul_u32_u24 {ea}, 384, {self.q}\nv_add_u32 {ea}, {scr}, {ea}")
        bu = {}
        for g in range(4):
            sd, gg = divmod(g, 2)
            e = max(done[(("d", sd), 2*gg + z, tt)] for z in range(2) for tt in range(2)) + 3
            spare = V("spare")[0]
            ee = [V("ee", 2), V("ee", 2)]
            for t in range(8):
                tt, r = divmod(t, 4)
                R = acc[(("d", sd), 2*gg, tt)][r]; Im = acc[(("d", sd), 2*gg + 1, tt)][r]
                o = L(f"""v_mul_f32 {spare}, {gp[g][2]}, {R}
                v_fma_f32 {spare}, -{gp[g][3]}, {Im}, {spare}
                v_mul_f32 {Im}, {gp[g][2]}, {Im}
                v_fmac_f32 {Im}, {gp[g][3]}, {R}""")
                o[0].earliest = e
                st += o
                bu[(g, t)] = (spare, Im); spare = R
                if t >= 1:
                    px = bu[(g, 0)] if t == 1 else (ee[t % 2][0], ee[t % 2][1])
                    d_ = ee[(t + 1) % 2]
                    st += cfma(d_[0], d_[1], gp[g][0], gp[g][1], px[0], px[1], *bu[(g, t)])
            st.append(I(f"ds_write_b64 {ea}, {ee[0]} offset:{128*g}"))
        eq = [V(f"eq{k}", 2) for k in range(4)]
        for k in range(4): st.append(I(f"ds_read_b64 {eq[k]}, {scr} offset:{512*k}"))
        s1, s2, s3 = V("s1", 2), V("s2", 2), V("s3", 2)
        l8, l32, l128, lw = self.l8, self.l32, self.l128, self.lw
        o = cfma(s1[0], s1[1], l8[0], l8[1], eq[0][0], eq[0][1], eq[1][0], eq[1][1]); o[0].delay = 6
        o += cfma(s2[0], s2[1], l8[0], l8[1], s1[0], s1[1], eq[2][0], eq[2][1])
        o += cfma(s3[0], s3[1], l8[0], l8[1], s2[0], s2[1], eq[3][0], eq[3][1])
        st += o
        wa = V("wa")
        st.append(I(f"ds_write_b64 {scr}, {s3} offset:2048", tag="ww"))
        st.append(I(f"v_lshlrev_b32 {wa}, 3, {self.lane}"))
        st.append(I(f"v_add_u32 {wa}, {SCR + 2048}, {wa}"))
        st.append(I("WAITLG ww", delay=3, deadline=bar[4] - 1))
        ww = [V(f"ww{k}", 2) for k in range(4)]
        for k in range(4): st.append(I(f"ds_read_b64 {ww[k]}, {wa} offset:{4096*k}", earliest=bar[4] + 1))
        u1, u2, ee = V("u1", 2), V("u2", 2), V("E", 2)
        o = cfma(u1[0], u1[1], l32[0], l32[1], ww[0][0], ww[0][1], ww[1][0], ww[1][1]); o[0].delay = 6
        o += cfma(u2[0], u2[1], l32[0], l32[1], u1[0], u1[1], ww[2][0], ww[2][1])
        o += cfma(ee[0], ee[1], l32[0], l32[1], u2[0], u2[1], ww[3][0], ww[3][1])
        st += o
        st.append(I(f"buffer_store_dwordx2 {ee}, {self.ve}, {sE}, 0 offen sc1", deadline=bar[4] + 36))
        pw = V("pw", 2)
        for k, src in enumerate((ww[0], u1, u2)):
            o = L(f"s_cmp_eq_u32 {W}, {k+1}\ns_cselect_b64 {MK[0]}, -1, 0"); o[1].glue = True
            st += o
            for z in range(2): st.append(I(f"v_cndmask_b32 {pw[z]}, {0 if k == 0 else pw[z]}, {src[z]}, {MK[0]}"))
        chk = self.ready_check("r1", 1, f"v_lshl_add_u32 %T%, {self.i16}, 4, {J}", 50)
        chk[0].earliest = 520
        st += chk
        vg = [V("vg0"), V("vg1")]
        st += L(f"""s_lshl_b32 {T0}, {MT}, 9
        s_sub_u32 {T0}, {16*512}, {T0}
        v_lshl_add_u32 {vg[0]}, {self.lane}, 3, {T0}
        v_add_u32 {vg[1]}, 4096, {vg[0]}""")
        ek = [V(f"ek{k}", 2) for k in range(15)]
        def eloads():
            return [I(f"buffer_load_dwordx2 {ek[k]}, {vg[k//8]}, {sE}, 0 offen offset:{(k%8)*512} sc1") for k in range(14, -1, -1)]
        el = eloads(); el[0].earliest = self.P.get("eld", 600); el[-1].deadline = el[0].earliest + 36
        for x in el[1:]: x.delay = 2
        st += el
        gg_ = [V("G", 2), V("G", 2)]
        def horner():
            o = []
            for k in range(13, -1, -1):
                px = ek[14] if k == 13 else gg_[(k + 1) % 2]
                o += cfma(gg_[k % 2][0], gg_[k % 2][1], l128[0], l128[1], px[0], px[1], ek[k][0], ek[k][1])
            return o
        o = horner(); o[0].delay = 40; st += o
        Gv = gg_[0]; lab = f"L{self.lab}_g"
        st.append(I(f"v_cmp_u_f32 vcc, {Gv[0]}, {Gv[1]}", deadline=self.P.get("eld", 600) + 125))
        br = I(f"s_cbranch_vccnz {lab}"); bk = I(f"{lab}_b:"); bk.glue = True
        st += [br, bk]
        self.extra[lab] = (L(f"{lab}:\ns_mov_b32 {CNT}, 0\n{lab}_l:\ns_sleep 2") + eloads() + L("s_waitcnt vmcnt(0)") + horner() +
            L(f"""v_cmp_u_f32 vcc, {Gv[0]}, {Gv[1]}
            s_nop 1
            s_cbranch_vccz {lab}_b
            s_add_u32 {CNT}, {CNT}, 1
            s_cmp_lt_u32 {CNT}, {self.P['spin']}
            s_cbranch_scc1 {lab}_l
            s_branch {lab}_b"""))
        cq = [V(f"cq{k}", 2) for k in range(4)]
        st += cfma(cq[0][0], cq[0][1], lw[0], lw[1], Gv[0], Gv[1], pw[0], pw[1])
        for k in range(1, 4):
            st += cfma(cq[k][0], cq[k][1], l8[0], l8[1], cq[k-1][0], cq[k-1][1], eq[k-1][0], eq[k-1][1])
        for k in range(4): st.append(I(f"ds_write_b64 {scr}, {cq[k]} offset:{512*k}"))
        cin = [V(f"cin{g}", 2) for g in range(4)]
        for g in range(4): st.append(I(f"ds_read_b64 {cin[g]}, {ea} offset:{128*g}", deadline=self.P.get("eld", 600) + 160))
        hw, hr, tq = V("hw"), V("hr"), V("tq")
        st += L(f"""s_lshl_b32 {T0}, {W}, 12
        s_add_u32 {T0}, {T0}, {SCR}
        v_lshl_add_u32 {hw}, {self.i16}, 6, {T0}
        v_lshl_add_u32 {hw}, {self.q}, 4, {hw}
        v_lshl_add_u32 {hr}, {self.i16}, 4, {T0}
        v_lshl_add_u32 {hr}, {self.q}, 9, {hr}""")
        for g in range(4):
            sd, gg = divmod(g, 2)
            pr, pi = V("hpr", 4), V("hpi", 4)
            for t in range(8):
                px = (cin[g][0], cin[g][1]) if t == 0 else bu[(g, t - 1)]
                br_, bi_ = bu[(g, t)]
                st += L(f"""v_fmac_f32 {br_}, {gp[g][0]}, {px[0]}
                v_fmac_f32 {bi_}, {gp[g][0]}, {px[1]}
                v_fma_f32 {br_}, -{gp[g][1]}, {px[1]}, {br_}
                v_fmac_f32 {bi_}, {gp[g][1]}, {px[0]}""")
                if t % 2 == 1:
                    st += L(f"""v_cvt_pk_bf16_f32 {pr[t//2]}, {bu[(g, t-1)][0]}, {br_}
                    v_cvt_pk_bf16_f32 {pi[t//2]}, -{bu[(g, t-1)][1]}, -{bi_}""")
            st.append(I(f"ds_write_b128 {hw}, {pr} offset:{1024*gg}"))
            st.append(I(f"ds_write_b128 {hw}, {pi} offset:{2048 + 1024*gg}", deadline=firstuse[("S", 0, 0, 0)] - 20 - 32*(3 - g)))
            if gg == 1:
                for part in range(2):
                    for tt in range(2):
                        for h in range(2):
                            st.append(I(f"ds_read_b64_tr_b16 {aHS(part, sd, tt, h)}, {hr} offset:{2048*part + 256*h + 8*tt}",
                                        deadline=firstuse[("S", 0, 0, 0)] - 10))
        return st

    def ready_check(self, name, val, addr, delay):
        t, rb = VR("rca"), VR("rcb"); lab = f"L{self.lab}_{name}"
        o = L(addr.replace("%T%", str(t)))
        ld = lambda: I(f"buffer_load_ubyte {rb}, {t}, {sD}, 0 offen sc1")
        o += [ld(), I(f"v_cmp_gt_u32 vcc, {val}, {rb}", delay=delay), I(f"s_cbranch_vccnz {lab}"), I(f"{lab}_b:")]
        o[-1].glue = True
        self.extra[lab] = (L(f"{lab}:\ns_mov_b32 {CNT}, 0\n{lab}_l:\ns_sleep {self.P['hsleep'] if self.role == 'helper' else 4}") + [ld()] +
            L(f"""s_waitcnt vmcnt(0)
            v_cmp_gt_u32 vcc, {val}, {rb}
            s_nop 1
            s_cbranch_vccz {lab}_b
            s_add_u32 {CNT}, {CNT}, 1
            s_cmp_lt_u32 {CNT}, {self.P['spin']}
            s_cbranch_scc1 {lab}_l
            s_branch {lab}_b"""))
        return o

    def resid(self, sD0):
        V = lambda n, k=1: VR(n, k)
        va, vd, t = V("rva"), V("rvd"), V("rt")
        xr = [[V("rx", 2) for tt in range(2)] for _ in range(2)]; dk = [V("rd", 2), V("rd", 2)]
        ld = L(f"""v_and_b32 {t}, 12, {self.i16}
        v_add_u32 {t}, {self.i16}, {t}
        s_lshl_b32 {T0}, {MT}, 2
        s_add_u32 {T0}, {T0}, {W}
        s_lshl_b32 {T0}, {T0}, 5
        v_add_u32 {t}, {T0}, {t}
        v_mul_u32_u24 {t}, 1152, {t}
        s_lshl_b32 {T0}, {sD0}, 1
        v_lshl_add_u32 {vd}, {self.q}, 3, {T0}
        v_add_u32 {va}, {t}, {vd}
        s_mov_b32 {T0}, {4*1152}""")
        for tl in range(2):
            ld.append(I(f"global_load_dwordx2 {dk[tl]}, {vd}, s[84:85] offset:{32*tl}", delay=2))
            for tt in range(2):
                ld.append(I(f"buffer_load_dwordx2 {xr[tl][tt]}, {va}, {sX}, {T0 if tt else 0} offen offset:{32*tl}", delay=6))
        res = [[V("res", 4) for tt in range(2)] for _ in range(2)]
        cp = []
        for tl in range(2):
            df = V("rdf", 4)
            for r in range(4):
                cp.append(I(f"v_lshlrev_b32 {df[r]}, 16, {dk[tl][r//2]}" if r % 2 == 0 else f"v_and_b32 {df[r]}, {HI16}, {dk[tl][r//2]}"))
            for tt in range(2):
                for r in range(4):
                    u = V("ru"); x = res[tl][tt][r]
                    cp.append(I(f"v_lshlrev_b32 {x}, 16, {xr[tl][tt][r//2]}" if r % 2 == 0 else f"v_and_b32 {x}, {HI16}, {xr[tl][tt][r//2]}"))
                    cp += L(f"v_sub_f32 {u}, {x}, {self.mean[tt]}\nv_mul_f32 {u}, {u}, {self.rs[tt]}\nv_fmac_f32 {x}, {u}, {df[r]}")
        return res, ld, cp
    def out_addr(self, sD0):
        V = lambda n, k=1: VR(n, k)
        self.ow = ow = [V("owa"), V("owb")]; self.ord = ord_ = [V("ora"), V("orb")]; self.vo = vo = V("vo")
        t, u = V("ot"), V("ou")
        return L(f"""s_lshl_b32 {T0}, {W}, 12
        s_add_u32 {T0}, {T0}, {SCR}
        v_and_b32 {t}, 12, {self.i16}
        v_add_u32 {t}, {self.i16}, {t}
        v_lshl_add_u32 {t}, {t}, 7, {T0}
        v_and_b32 {u}, 7, {self.lane}
        v_xor_b32 {u}, {u}, {self.q}
        v_lshl_add_u32 {ow[0]}, {u}, 4, {t}
        v_xor_b32 {ow[1]}, 64, {ow[0]}
        v_bfe_u32 {t}, {self.lane}, 3, 2
        v_xor_b32 {t}, {t}, {self.lane}
        v_lshl_add_u32 {ord_[0]}, {t}, 4, {T0}
        v_xor_b32 {ord_[1]}, 64, {ord_[0]}
        s_lshl_b32 {T0}, {MT}, 2
        s_add_u32 {T0}, {T0}, {W}
        s_lshl_b32 {T0}, {T0}, 5
        v_lshrrev_b32 {t}, 3, {self.lane}
        v_add_u32 {t}, {T0}, {t}
        v_mul_u32_u24 {t}, 2304, {t}
        v_and_b32 {u}, 7, {self.lane}
        v_lshl_add_u32 {t}, {u}, 4, {t}
        s_lshl_b32 {T0}, {sD0}, 2
        v_add_u32 {vo}, {T0}, {t}""")
    def zero_pads(self, pads=(0, 42, 60, 66)):
        return [I(f"v_accvgpr_write_b32 a{68*tt + p + k}, 0") for tt in range(2) for p in pads for k in range(2)]
    def owner_batches(self):
        return [dict(name="a", base=2, slots=[(n, b) for n in range(1, 6) for b in range(2)]),
                dict(name="b", base=44, slots=[(n, b) for n in (6, 7) for b in range(2)]),
                dict(name="c", base=62, slots=[(8, 0)])]
    def batch_loads(self, bt):
        o = []
        for k, (n, b) in enumerate(bt["slots"]):
            if b == 0: o += L(f"s_sub_u32 {T2}, {UM1}, {n}\ns_and_b32 {T2}, {T2}, 7\ns_lshl_b32 {T2}, {T2}, 14")
            o += L(f"s_sub_u32 {SOL}, {Z1 if b else Z0}, {T2}")
            for tt in range(2):
                o.append(I(f"buffer_load_dwordx4 {areg(68*tt + bt['base'] + 4*k, 4)}, {self.vl}, {sL}, {SOL} offen offset:{1024*tt} sc1"))
        return o
    def finish(self, batches, own, res, uid=""):
        V = lambda n, k=1: VR(n, k)
        c = []; prev = None
        for bi, bt in enumerate(batches):
            lab = f"L{self.lab}_x{uid}{bt['name']}"
            cur = [[V("red", 4) for tt in range(2)] for _ in range(2)]
            c.append(I(f"{lab}_b:"))
            for k in range(len(bt["slots"]) + 1):
                for tt in range(2):
                    t = k % 2
                    src = cur[t][tt] if k >= 2 else (prev[t][tt] if prev else 0)
                    c.append(I(f"{MF} {cur[t][tt]}, {aSEL}, {areg(68*tt + bt['base'] - 2 + 4*k, 4)}, {src}"))
            if bi == 0 and own is not None:
                c.append(I(f"s_cbranch_scc0 {lab}_s"))
                c.insert(0, I("s_cmp_eq_u32 0, 0"))
                for t in range(2):
                    for tt in range(2):
                        for r in range(4): c.append(I(f"v_fmac_f32 {res[t][tt][r]}, {fb(LN2)}, {own[t][tt][r]}"))
                c.append(I(f"{lab}_s:")); c.append(I("s_nop 7"))
            c += L(f"""v_cmp_u_f32 vcc, {cur[0][0][0]}, {cur[0][1][0]}
            v_cmp_u_f32 {MK[0]}, {cur[1][0][0]}, {cur[1][1][0]}
            s_or_b64 vcc, vcc, {MK[0]}
            s_and_b64 vcc, vcc, {ACC}""")
            keep = [x for row in (prev or []) for x in row] + ([x for row in own for x in row] if bi == 0 and own else [])
            c.append(I(f"s_cbranch_scc1 {lab}", uses=keep))
            c += L(f"s_mov_b32 {CNT}, 0\ns_mov_b64 {ACC}, -1")
            self.extra[lab] = (L(f"{lab}:") + L(f"s_sleep {bt.get('sleep', 1)}") + self.batch_loads(bt) +
                L(f"""s_add_u32 {CNT}, {CNT}, 1
                s_cmp_lt_u32 {CNT}, {self.P['spin']}
                s_cselect_b64 {ACC}, -1, 0
                s_cmp_eq_u32 0, 1
                s_waitcnt vmcnt(0)
                s_branch {lab}_b"""))
            prev = cur
        c.insert(0, I(f"s_mov_b32 {CNT}, 0"))
        for tt in range(2):
            for t in range(2):
                for r in range(4): c.append(I(f"v_fmac_f32 {res[t][tt][r]}, {fb(LN2)}, {prev[t][tt][r]}"))
                c.append(I(f"ds_write_b128 {self.ow[t]}, {res[t][tt]} offset:{512*tt}"))
        o = [V("o", 4) for _ in range(4)]
        for k in range(4): c.append(I(f"ds_read_b128 {o[k]}, {self.ord[k % 2]} offset:{1024*k}"))
        for k in range(4):
            c += L(f"s_mov_b32 {T0}, {k*8*2304}\nbuffer_store_dwordx4 {o[k]}, {self.vo}, {sO}, {T0} offen")
        return c

    def helper(self):
        V = lambda n, k=1: VR(n, k)
        c = []
        self.vl = V("vl")
        c += L(f"""v_lshl_add_u32 {self.vl}, {self.lane}, 4, {M0B}
        s_mul_i32 {T1}, {MT}, {18*131072}
        s_add_u32 {T1}, {T1}, {PBASE}
        s_add_u32 s44, s44, {T1}
        s_addc_u32 s45, s45, 0
        s_lshl_b32 {TOFF[0]}, {T3}, 6
        s_add_u32 {TOFF[1]}, {TOFF[0]}, 32
        s_add_u32 {T1}, {T3}, 1
        s_sub_u32 {T2}, {T1}, 9
        s_min_u32 {T1}, {T1}, {T2}
        s_lshl_b32 {TOFF[2]}, {T1}, 6""")
        rs = []
        for h in range(3):
            res, ld, cp = self.resid(TOFF[h]); c += ld + cp; rs.append(res)
        c += self.zero_pads((0, 66))
        c += self.ready_check("r2", 2, f"v_min_u32 %T%, 14, {self.i16}\ns_lshl_b32 {T0}, {MT}, 4\nv_add_u32 %T%, {T0}, %T%", 0)
        c += self.stamp(2)
        for h in range(3):
            ao = h & 1
            c += L(f"s_mov_b32 {Z0}, {(14 + ao)*8192}\ns_mov_b32 {Z1}, {(15 - ao)*8192}")
            c += self.out_addr(TOFF[h])
            if h < 2:
                bts = [dict(name="a", base=2, slots=[(n, b) for n in range(1, 9) for b in range(2)], sleep=8)]
            else:
                c += self.zero_pads((42, 60)); bts = self.owner_batches(); bts[0]["sleep"] = 8
            for bt in (bts if h < 2 else bts[:1]): c += self.batch_loads(bt)
            fin = self.finish(bts, None, rs[h], uid=str(h))
            if h == 2:
                for bt in bts[1:]:
                    idx = [k for k, x in enumerate(fin) if x.text == f"L{self.lab}_x2{bt['name']}_b:"][0]
                    fin[idx:idx] = self.batch_loads(bt)
            c += fin + self.stamp(3 + h if h < 2 else 6)
            if h < 2: c += L("s_add_u32 s44, s44, 0x20000\ns_addc_u32 s45, s45, 0")
        return c

    def build(self):
        VR.all.clear()
        code = [I(f"L{self.lab}:")] + self.prologue()
        code += self.helper() if self.role == "helper" else self.main()
        if self.P["stamps"]:
            t = VR("stt")
            code += L("s_waitcnt vmcnt(0)") + self.stamp(5)
            code += L(f"""s_lshl_b32 {T0}, s2, 10
            s_add_u32 {T0}, {T0}, {STAMP}
            v_lshlrev_b32 {t}, 2, v0
            buffer_store_dword {self.vst}, {t}, {sWS}, {T0} offen""")
        code.append(I("s_endpgm", uses=["v0"]))
        lastw = {}
        for x in code:
            for y in getattr(x, "needs", []):
                for r in y.wr: assert lastw.get(r) is y, ("stale scalar for DMA", x.text, y.text)
            for r in x.wr: lastw[r] = x
        peak = regalloc(code, self.extra)
        rep = []
        code, auto = insert_waits(code, rep)
        code, nops = fix_hazards(code)
        print(f"  {self.role}: {len(code)} instr, vgpr peak {peak}, auto waits {auto}, hazard nops {nops}")
        for lab, blk in self.extra.items():
            b, _ = fix_hazards(blk)
            code += [b[0], I("s_nop 7")] + b[1:]
        return code

def generate(**kw):
    P = dict(DEF); P.update(kw)
    nm = {"P": 16, "Q": 8, "R": 4, "S": 2}[P["mapping"]]; lm = int(math.log2(nm)); ng = nm // 2; lg = int(math.log2(ng))
    K = NAME + "_kernel"
    hdr = open("cdna_kernels/" + NAME + ".s.ref").read().split("; Override launch")[0] if P.get("hdr", 1) else ""
    pr = P.get("probe")
    if pr is None: o = hdr + "; @launch grid=(256,1,1) block=(256,1,1) lds=163840\n"
    else: o = hdr + f"; @launch kernel=probe_kernel grid=(1,1,1) block=(64,1,1) lds=0\n; @launch kernel={K} grid=(256,1,1) block=(256,1,1) lds=163840\n"
    o += f'.amdgcn_target "amdgcn-amd-amdhsa--gfx950"\n.text\n.globl {K}\n.p2align 8\n.type {K},@function\n{K}:\n'
    e = ""
    if P["stamps"]: e += f"s_memrealtime s[{KA+30}:{KA+31}]\ns_waitcnt lgkmcnt(0)\n"
    e += f"""s_cmp_ge_u32 s2, 256
s_cbranch_scc1 Lend
s_load_dwordx16 s[{KA}:{KA+15}], s[0:1], 0
s_load_dwordx2 s[84:85], s[0:1], 64
s_load_dwordx8 s[88:95], s[0:1], 80
s_load_dwordx2 s[96:97], s[0:1], 112
v_lshrrev_b32 v1, 6, v0
s_and_b32 {T0}, s2, 7
v_readfirstlane_b32 {W}, v1
s_lshr_b32 {T1}, s2, 3
s_cmp_ge_u32 {T1}, 30
s_cbranch_scc1 Lhsel
s_and_b32 {T2}, {T0}, {ng-1}
s_mul_i32 {T2}, {T2}, 30
s_add_u32 {T2}, {T2}, {T1}
s_lshr_b32 {J}, {T2}, {lm}
s_and_b32 {T2}, {T2}, {nm-1}
s_lshr_b32 {T0}, {T0}, {lg}
s_lshl_b32 {T0}, {T0}, {lm}
s_add_u32 {MT}, {T0}, {T2}
s_cmp_lt_u32 {J}, 9
s_cbranch_scc1 LM
s_branch LF
Lhsel:
s_lshl_b32 {T0}, {T0}, 1
s_add_u32 {T0}, {T0}, {T1}
s_sub_u32 {MT}, {T0}, 30
s_mov_b32 {J}, 15
s_branch LH
Lend:
s_endpgm
"""
    o += e
    for role in ("helper", "mixed", "pure"):
        o += ".p2align 6\n" + "\n".join(x.text for x in Role(role, P).build()) + "\n"
    if pr is not None:
        slot, stride, n, off = [int(x) for x in pr.split(":")]
        o += f""".globl probe_kernel
.p2align 8
.type probe_kernel,@function
probe_kernel:
s_cmp_ge_u32 s2, 1
s_cbranch_scc1 Lpend
s_load_dwordx2 s[4:5], s[0:1], {slot}
s_load_dwordx2 s[8:9], s[0:1], 112
s_mov_b32 s6, {off + stride*n + 4}
s_mov_b32 s7, 0x20000
s_mov_b32 s10, 0x4000000
s_mov_b32 s11, 0x20000
v_mov_b32 v1, {off}
s_mov_b32 s12, 0
s_waitcnt lgkmcnt(0)
s_memrealtime s[14:15]
s_cmp_ge_u32 s12, {n}
s_cbranch_scc1 Lpdone
Lpl:
buffer_load_dword v2, v1, s[4:7], 0 offen
v_add_u32 v1, {stride}, v1
s_add_u32 s12, s12, 1
s_cmp_lt_u32 s12, {n}
s_waitcnt vmcnt(0)
s_cbranch_scc1 Lpl
Lpdone:
s_memrealtime s[16:17]
s_waitcnt lgkmcnt(0)
s_sub_u32 s16, s16, s14
v_mov_b32 v2, s16
v_mov_b32 v1, 0x70000
buffer_store_dword v2, v1, s[8:11], 0 offen
Lpend:
s_endpgm
"""
    o += f""".section .rodata,"a"
.p2align 6
.amdhsa_kernel {K}
  .amdhsa_next_free_vgpr 512
  .amdhsa_next_free_sgpr 102
  .amdhsa_accum_offset 256
  .amdhsa_group_segment_fixed_size 0
  .amdhsa_kernarg_size 120
  .amdhsa_user_sgpr_count 2
  .amdhsa_user_sgpr_kernarg_segment_ptr 1
  .amdhsa_system_sgpr_workgroup_id_x 1
.end_amdhsa_kernel
"""
    if pr is not None:
        o += """.p2align 6
.amdhsa_kernel probe_kernel
  .amdhsa_next_free_vgpr 8
  .amdhsa_next_free_sgpr 32
  .amdhsa_accum_offset 8
  .amdhsa_group_segment_fixed_size 0
  .amdhsa_kernarg_size 120
  .amdhsa_user_sgpr_count 2
  .amdhsa_user_sgpr_kernarg_segment_ptr 1
  .amdhsa_system_sgpr_workgroup_id_x 1
.end_amdhsa_kernel
"""
    return o

if __name__ == "__main__":
    out = sys.argv[1]; kw = {}
    for a in sys.argv[2:]:
        k, v = a.split("="); kw[k] = int(v) if v.lstrip("-").isdigit() else v
    open(out, "w").write(generate(**kw))
```

```python
import sys
NAME = "parallel_sum__ssm_conv_s5__dense_activation_silu__prompt"
def mk(src, out, k, mult=10):
    s = open(src).read()
    K = NAME + "_kernel"
    s = s.replace("; @launch grid=(256,1,1) block=(256,1,1) lds=163840\n",
        f"; @launch kernel={K} grid=(256,1,1) block=(256,1,1) lds=163840\n; @launch kernel=dec_kernel grid=(1,1,1) block=(256,1,1) lds=256\n")
    body = f""".globl dec_kernel
.p2align 8
.type dec_kernel,@function
dec_kernel:
s_cmp_ge_u32 s2, 1
s_cbranch_scc1 Ldend
s_load_dwordx2 s[8:9], s[0:1], 112
s_mov_b32 s10, 0x10000000
s_mov_b32 s11, 0x20000
v_lshlrev_b32 v1, 10, v0
s_mov_b32 s5, 0x80000
v_mov_b32 v4, 0
v_mov_b32 v5, -1
v_mov_b32 v6, 0
ds_write_b64 v4, v[5:6]
s_waitcnt lgkmcnt(0)
buffer_load_dword v2, v1, s[8:11], s5 offen
buffer_load_dword v3, v1, s[8:11], s5 offen offset:{4*k}
s_barrier
s_waitcnt vmcnt(0)
v_cmp_gt_u32 vcc, 240, v0
s_nop 1
v_cndmask_b32 v3, {"v3" if k in (0, 5) else "0"}, v3, vcc
ds_min_u32 v4, v2
ds_max_u32 v4, v3 offset:4
s_waitcnt lgkmcnt(0)
s_barrier
ds_read_b64 v[6:7], v4
s_waitcnt lgkmcnt(0)
v_sub_u32 v6, v7, v6
s_nop 1
v_readfirstlane_b32 s12, v6
s_min_u32 s12, s12, 20000
s_mul_i32 s12, s12, {mult}
s_memrealtime s[14:15]
s_waitcnt lgkmcnt(0)
Ldl:
s_memrealtime s[16:17]
s_waitcnt lgkmcnt(0)
s_sub_u32 s16, s16, s14
s_cmp_lt_u32 s16, s12
s_cbranch_scc1 Ldl
Ldend:
s_endpgm
"""
    body = body.replace("ds_write_b64 v4, v[5:6]", "ds_write_b32 v4, v5\nds_write_b32 v4, v6 offset:4")
    s = s.replace('.section .rodata,"a"', body + '.section .rodata,"a"')
    s += """.p2align 6
.amdhsa_kernel dec_kernel
  .amdhsa_next_free_vgpr 8
  .amdhsa_next_free_sgpr 32
  .amdhsa_accum_offset 8
  .amdhsa_group_segment_fixed_size 0
  .amdhsa_kernarg_size 120
  .amdhsa_user_sgpr_count 2
  .amdhsa_user_sgpr_kernarg_segment_ptr 1
  .amdhsa_system_sgpr_workgroup_id_x 1
.end_amdhsa_kernel
"""
    open(out, "w").write(s)
if __name__ == "__main__":
    src = sys.argv[1]
    mk(src, "d_base.s", 5, 0)
    for k in sys.argv[2:]: mk(src, f"d_{k}.s", int(k))
```
